```python
import torch

def _softmax(x, axis=-1):
    return torch.softmax(x, dim=axis)
def _gelu(x):
    return torch.nn.functional.gelu(x, approximate="tanh")
def _silu(x):
    return torch.nn.functional.silu(x)
def _sigmoid(x):
    return torch.sigmoid(x)
def _layernorm(x, axis=-1, eps=1e-5):
    m = x.mean(dim=axis, keepdim=True)
    v = x.var(dim=axis, keepdim=True, unbiased=False)
    return (x - m) / torch.sqrt(v + eps)
def _scatter_add(tgt, idx, src, axis=0):
    return tgt.clone().index_add_(axis, idx, src)
def _segment_sum(src, seg, n):
    out = torch.zeros((n,) + src.shape[1:], dtype=src.dtype)
    return out.index_add_(0, seg, src)
def _pad(x, pw):
    flat = tuple(v for pair in reversed(pw) for v in pair)
    return torch.nn.functional.pad(x, flat)

kernel_name = 'concat_heads__ssm_conv_s4d__spectral_gfnet__prompt'

def setup_inputs():

    _w = (lambda a: (lambda t: t.to(torch.bfloat16) if t.is_floating_point() else t)(torch.as_tensor(a)))
    def _A_setup():
        Bsz, L, D, N = 1, 2048, 576, 128
        return {
            "u": _w((lambda *s: torch.randn(*s, dtype=torch.bfloat16) * 0.05)(Bsz, L, D)),
            "log_A_real": _w((lambda *s: torch.randn(*s, dtype=torch.bfloat16) * 6.4)(D, N) * 0.5),
            "A_imag": _w((lambda *s: torch.randn(*s, dtype=torch.bfloat16) * 0.05)(D, N) * 3.14),
            "C_real": _w((lambda *s: torch.randn(*s, dtype=torch.bfloat16) * 0.05)(D, N) / N ** 0.5),
            "C_imag": _w((lambda *s: torch.randn(*s, dtype=torch.bfloat16) * 0.05)(D, N) / N ** 0.5),
            "log_dt": _w((lambda *s: torch.randn(*s, dtype=torch.bfloat16) * 0.05)(D) * 0.5 - 4.0),
            "D_skip": _w((lambda *s: torch.randn(*s, dtype=torch.bfloat16) * 0.05)(D)),
        }
    _A_in = _A_setup()

    def _B_setup():
        B, S, D = 1, 2048, 576
        Df = D // 2 + 1
        return {
            "x": _w((lambda *s: torch.randn(*s, dtype=torch.bfloat16) * 0.05)(B, S, D)),
            "w_r": _w((lambda *s: torch.randn(*s, dtype=torch.bfloat16) * 0.8)(S, Df) * 0.02),
            "w_i": _w((lambda *s: torch.randn(*s, dtype=torch.bfloat16) * 0.8)(S, Df) * 0.02),
        }
    _B_in = _B_setup()

    return {
        "A_u": _A_in["u"],
        "A_log_A_real": _A_in["log_A_real"],
        "A_A_imag": _A_in["A_imag"],
        "A_C_real": _A_in["C_real"],
        "A_C_imag": _A_in["C_imag"],
        "A_log_dt": _A_in["log_dt"],
        "A_D_skip": _A_in["D_skip"],
        "B_x": _B_in["x"],
        "B_w_r": _B_in["w_r"],
        "B_w_i": _B_in["w_i"],
    }

def reference(A_u, A_log_A_real, A_A_imag, A_C_real, A_C_imag, A_log_dt, A_D_skip, B_x, B_w_r, B_w_i):
    def _A_ref(u, log_A_real, A_imag, C_real, C_imag, log_dt, D_skip):
        L = u.shape[1]
        dt = torch.exp(log_dt)
        A = -torch.exp(log_A_real) + 1j * A_imag
        C = (C_real + 1j * C_imag) * dt[:, None]
        pos = (lambda x, dt: x.to(dt))(torch.arange(L), log_dt.dtype)
        P = torch.exp((A * dt[:, None])[:, :, None] * pos[None, None, :])
        K = 2.0 * torch.einsum("dn,dnl->dl", C, P).real
        L2 = 2 * L
        u_t = (lambda x, *d: x.permute(*d))(u, 0, 2, 1)
        Kf = (lambda x, *a, **k: torch.fft.rfft(x.float(), *a, **k))(K, L2)
        Uf = (lambda x, *a, **k: torch.fft.rfft(x.float(), *a, **k))(u_t, L2)
        y = (lambda x, *a, **k: torch.fft.irfft(x, *a, **k).to(torch.bfloat16))(Uf * Kf[None, :, :], L2)[:, :, :L]
        y = (lambda x, *d: x.permute(*d))(y, 0, 2, 1)
        return y + u * D_skip[None, None, :]

    def _B_ref(x, w_r, w_i):
        B, S, D = x.shape
        X = (lambda x, axes=(-2,-1): torch.fft.rfft2(x.float(), dim=axes))(x, axes=(-2, -1))
        W = w_r + 1j * w_i
        X = X * W
        y = (lambda x, s, axes=(-2,-1): torch.fft.irfft2(x, s=s, dim=axes).to(torch.bfloat16))(X, (S, D), axes=(-2, -1))
        return y

    a = _A_ref(A_u, A_log_A_real, A_A_imag, A_C_real, A_C_imag, A_log_dt, A_D_skip)
    b = _B_ref(B_x, B_w_r, B_w_i)
    return torch.concatenate([a, b], axis=-1)
```

```python
import re
from contextlib import contextmanager

def regs_of(tok):
    tok = tok.strip()
    tok = tok.lstrip('-')
    m = re.fullmatch(r'abs\((.*)\)', tok) or re.fullmatch(r'\|(.*)\|', tok)
    if m: tok = m.group(1)
    m = re.fullmatch(r'([vs])(\d+)', tok)
    if m: return {(m.group(1), int(m.group(2)))}
    m = re.fullmatch(r'([vs])\[(\d+):(\d+)\]', tok)
    if m: return {(m.group(1), i) for i in range(int(m.group(2)), int(m.group(3)) + 1)}
    if tok in ('vcc', 'vcc_lo', 'vcc_hi'): return {('s', 'vcc')}
    if tok in ('exec', 'exec_lo', 'exec_hi'): return {('s', 'exec')}
    if tok == 'm0': return {('s', 'm0')}
    return set()

TRANS = ('v_exp_f32', 'v_log_f32', 'v_rcp_f32', 'v_rsq_f32', 'v_sqrt_f32', 'v_sin_f32', 'v_cos_f32')

class Ins:
    def __init__(self, text, cond=False):
        self.text = text; self.cond = cond
        self.label = None
        t = text.split(';')[0].strip()
        if t.endswith(':'):
            self.label = t[:-1]; self.op = None; self.w = set(); self.r = set(); self.kind = 'label'; return
        parts = t.split(None, 1)
        self.op = op = parts[0]
        rest = parts[1] if len(parts) > 1 else ''
        ops = [o.strip() for o in re.split(r',(?![^\[]*\])', rest)] if rest else []
        mods = ''
        if ops:
            last = ops[-1].split(None, 1)
            if len(last) > 1 and not last[0].startswith('hwreg'): ops[-1] = last[0]; mods = last[1]
        self.ops = ops; self.mods = mods
        R = lambda i: regs_of(ops[i]) if i < len(ops) else set()
        allr = lambda a: set().union(*[R(i) for i in range(a, len(ops))]) if len(ops) > a else set()
        w, r = set(), set(); kind = 'other'
        self.srcC = set(); self.srcAB = set(); self.data = set()
        if op.startswith('v_mfma'):
            kind = 'mfma'; w = R(0); self.srcAB = R(1) | R(2); self.srcC = R(3); r = self.srcAB | self.srcC
            self.passes = 4 if '16x16' in op else 8
        elif op.startswith('v_'):
            kind = 'valu'
            if op.startswith('v_cmp'): w = R(0); r = allr(1)
            elif op.startswith('v_swap') or op.startswith('v_permlane'): w = R(0) | R(1); r = set(w)
            elif op.startswith(('v_add_co', 'v_addc_co', 'v_sub_co', 'v_subb_co')): w = R(0) | R(1); r = allr(2)
            else:
                w = R(0); r = allr(1)
                if op.startswith(('v_fmac', 'v_dot2c')) or '_dpp' in op: r |= R(0)
        elif op.startswith('ds_'):
            kind = 'ds'
            if op.startswith(('ds_read', 'ds_bpermute', 'ds_permute', 'ds_swizzle')): w = R(0); r = allr(1)
            else: r = allr(0)
            if 'addtid' in op: r |= {('s', 'm0')}
        elif op.startswith(('global_', 'buffer_')):
            kind = 'vmem'
            lds = ('_lds_' in op) or re.search(r'\blds\b', mods) is not None
            self.lds = lds
            if lds: r = allr(0) | {('s', 'm0')}
            elif '_load' in op: w = R(0); r = allr(1)
            elif op.startswith('global_store'): r = allr(0); self.data = R(1)
            elif op.startswith('buffer_store'): r = allr(0); self.data = R(0)
            else: r = allr(0)
        elif op.startswith(('s_load', 's_memtime', 's_memrealtime')):
            kind = 'smem'; w = R(0); r = allr(1)
        elif op.startswith('s_'):
            kind = 'salu'
            if op.startswith(('s_cmp', 's_cbranch', 's_branch', 's_waitcnt', 's_nop', 's_barrier', 's_endpgm', 's_sleep', 's_setprio', 's_bitcmp')):
                r = allr(0)
                if 'vcc' in op: r |= {('s', 'vcc')}
                if 'exec' in op: r |= {('s', 'exec')}
            else:
                w = R(0); r = allr(1)
                if 'saveexec' in op: w |= {('s', 'exec')}; r |= {('s', 'exec')}
        self.w, self.r, self.kind = w, r, kind
    def states(self):
        if self.kind == 'label': return 0
        if self.op == 's_nop': return int(self.ops[0], 0) + 1
        return 1

def need_states(p, c):
    n = 0
    V = lambda s: {x for x in s if x[0] == 'v'}
    Sg = lambda s: {x for x in s if x[0] == 's'}
    if p.kind == 'valu':
        pv, ps = V(p.w), Sg(p.w)
        if c.kind == 'mfma' and pv & c.r: n = max(n, 2)
        if c.kind == 'valu':
            if p.op in TRANS and c.op not in TRANS and pv & c.r: n = max(n, 1)
            if p.op.startswith('v_dot2') and pv & (c.r | c.w):
                if not (c.op == p.op and not (pv & (regs_of(c.ops[1]) | regs_of(c.ops[2])))): n = max(n, 3)
            if '_dpp' in c.op and pv & c.r: n = max(n, 2)
            if c.op.startswith('v_permlane') and pv & c.r: n = max(n, 2)
            if c.op.startswith(('v_readlane', 'v_readfirstlane')) and pv & c.r: n = max(n, 1)
            if ps & c.r: n = max(n, 2)
            if 'sdwa' in p.op and pv & (c.r | c.w): n = max(n, 1)
            if ('op_sel' in p.mods and not p.op.startswith('v_pk_')) and pv & (c.r | c.w): n = max(n, 1)
        if p.op.startswith('v_dot2') and c.kind in ('ds', 'vmem', 'mfma') and pv & c.r: n = max(n, 3)
        if c.kind == 'vmem' and ps & c.r: n = max(n, 5)
        if c.kind == 'salu' and ps & c.r: n = max(n, 1)
    if p.kind == 'mfma':
        full = {4: 8, 8: 12}[p.passes]
        if c.kind == 'mfma':
            if p.w & c.srcAB: n = max(n, full)
            if p.w & c.srcC:
                if not (p.w == c.srcC and p.passes == c.passes): n = max(n, full - 2)
            elif p.w & c.w: n = max(n, full - 2)
        elif c.kind == 'valu':
            if p.w & (c.r | c.w): n = max(n, full)
            if p.srcC & c.w: n = max(n, p.passes - 1)
        elif c.kind in ('ds', 'vmem'):
            if p.w & (c.r | c.w): n = max(n, full)
    if p.kind == 'vmem' and len(p.data) >= 3 and p.data & c.w:
        n = max(n, 2 if c.kind == 'valu' else 1)
    if p.kind == 'salu' and ('s', 'm0') in p.w and c.kind in ('ds', 'vmem') and ('s', 'm0') in c.r: n = max(n, 1)
    return n

class Asm:
    def __init__(self):
        self.ins = []; self._cond = 0
    def __call__(self, text):
        for t in text.split('\n'):
            t = t.strip()
            if t and not t.startswith(';'): self.ins.append(Ins(t, self._cond > 0))
    @contextmanager
    def cond(self):
        self._cond += 1
        yield
        self._cond -= 1
    def waits(self):
        out = []
        st = {'vm': [], 'lg': [], 'iss': set()}
        snaps = {}
        seen_labels = set()
        def copy(s): return {'vm': [list(e) for e in s['vm']], 'lg': [list(e) for e in s['lg']], 'iss': set(s['iss'])}
        def merge(p, q):
            r = {'iss': p['iss'] & q['iss']}
            for nm in ('vm', 'lg'):
                d = {}
                for e in p[nm] + q[nm]:
                    e = list(e)
                    if e[3] not in r['iss']: e[1] = True
                    if e[3] in d: d[e[3]][1] = d[e[3]][1] or e[1]
                    else: d[e[3]] = e
                r[nm] = [d[i] for i in sorted(d)]
            return r
        for idx, i in enumerate(self.ins):
            if i.kind == 'label':
                seen_labels.add(i.label)
                for sn in snaps.get(i.label, []):
                    st = sn if st is None else merge(st, sn)
                if st is None: st = {'vm': [], 'lg': [], 'iss': set()}
                out.append(i); continue
            assert st is not None, ("unreachable", i.text)
            vm, lg = st['vm'], st['lg']
            if i.op == 's_waitcnt':
                m = re.search(r'vmcnt\((\d+)\)', i.text)
                if m: self._trim(vm, int(m.group(1)))
                m = re.search(r'lgkmcnt\((\d+)\)', i.text)
                if m:
                    if int(m.group(1)) == 0 or not any(e[2] for e in lg): self._trim(lg, int(m.group(1)))
                out.append(i); continue
            touch = i.r | i.w
            w = []
            for name, lst, cap in (('vmcnt', vm, 62), ('lgkmcnt', lg, 14)):
                hit = [k for k, e in enumerate(lst) if e[0] & touch]
                if hit:
                    k = hit[-1]
                    n = sum(1 for e in lst[k+1:] if not e[1])
                    if name == 'lgkmcnt' and any(e[2] for e in lst): n = 0
                    n = min(n, cap)
                    w.append(f'{name}({n})')
                    self._trim(lst, n)
            if w: out.append(Ins('s_waitcnt ' + ' '.join(w)))
            if i.kind in ('vmem', 'ds', 'smem'):
                (vm if i.kind == 'vmem' else lg).append([set(i.w), False, i.kind == 'smem', idx])
                st['iss'].add(idx)
            out.append(i)
            if i.op.startswith('s_cbranch') or i.op == 's_branch':
                tgt = i.ops[0]
                if tgt not in seen_labels: snaps.setdefault(tgt, []).append(copy(st))
                elif not tgt.endswith('_chk'):
                    pend = [e for e in vm + lg if any(not (x[0] == 's' and isinstance(x[1], int) and 64 <= x[1] < 96) for x in e[0])]
                    assert not pend, ("backward branch with pending loads", i.text, pend)
            if i.op in ('s_endpgm', 's_branch'): st = None
        self.ins = out
    @staticmethod
    def _trim(lst, n):
        keep = []; c = 0
        for e in reversed(lst):
            if c >= n: break
            keep.append(e)
            if not e[1]: c += 1
        lst[:] = list(reversed(keep))
    def hazards(self):
        changed = True
        while changed:
            changed = False
            ins = self.ins
            lab = {i.label: k for k, i in enumerate(ins) if i.kind == 'label'}
            preds = [[] for _ in ins]
            for k, i in enumerate(ins):
                if i.kind != 'label' and (i.op.startswith('s_cbranch') or i.op == 's_branch'):
                    preds[lab[i.ops[0]]].append(k)
                if k + 1 < len(ins) and not (i.kind != 'label' and i.op in ('s_branch', 's_endpgm')):
                    preds[k+1].append(k)
            for k, c in enumerate(ins):
                if c.kind == 'label': continue
                worst = 0
                stack = [(p, 0) for p in preds[k]]; seen = {}
                while stack:
                    p, d = stack.pop()
                    if d >= 12 or seen.get(p, 99) <= d: continue
                    seen[p] = d
                    pi = ins[p]
                    if pi.kind != 'label':
                        worst = max(worst, need_states(pi, c) - d)
                    for pp in preds[p]: stack.append((pp, d + pi.states()))
                if worst > 0:
                    ins.insert(k, Ins(f's_nop {worst-1}', c.cond)); changed = True
                    break
    def text(self):
        self.waits(); self.hazards()
        return ''.join((i.text if i.kind == 'label' else '  ' + i.text) + '\n' for i in self.ins)
    def maxregs(self):
        mv = max([x[1] for i in self.ins for x in (i.r | i.w) if x[0] == 'v'] + [0])
        ms = max([x[1] for i in self.ins for x in (i.r | i.w) if x[0] == 's' and isinstance(x[1], int)] + [0])
        return mv, ms
```

```python
import numpy as np

def f2bf(x):
    x = np.ascontiguousarray(x, dtype=np.float32)
    u = x.view(np.uint32)
    r = ((u + 0x7FFF + ((u >> 16) & 1)) >> 16).astype(np.uint16)
    return r
def bf2f(u):
    return (np.ascontiguousarray(u).astype(np.uint32) << 16).view(np.float32)
def rbf(x):
    return bf2f(f2bf(x))

S, D = 2048, 576
NQ = 145
XB = 0
WB = 0x250000
UB = 0x4A0000
LANE = np.arange(64)
LN = LANE & 15
LG = LANE >> 4

QLIST = []
for kp in range(12):
    if kp < 6: ks = range(0, 13)
    elif kp == 6: ks = range(0, 12)
    else: ks = range(1, 12)
    for k1 in ks: QLIST.append((k1, kp))
assert len(QLIST) == NQ
QOF = {kk: i for i, kk in enumerate(QLIST)}
def kappa(k1, k2):
    k = k1 + 24 * k2
    return k if k <= 288 else 576 - k
def col_weight(q, col):
    k1, kp = QLIST[q]
    k2 = 2 * kp + col
    if k1 == 0 and k2 in (0, 12): return 1.0
    if k1 == 0 and k2 == 13: return 0.0
    return 2.0
Q288 = QOF[(0, 6)]
def sw(q): return (q >> 1) & 7

def frag(fn, nj=8):
    a = np.zeros((64, nj), np.float64)
    for l in range(64):
        for j in range(nj):
            a[l, j] = fn(l & 15, l >> 4, j)
    return a
def frag_dw(a):
    b = f2bf(a.astype(np.float32)).astype(np.uint32)
    return b[:, 0::2] | (b[:, 1::2] << 16)
def f32_dw(a):
    return np.ascontiguousarray(a, dtype=np.float32).view(np.uint32)
c_ = lambda num, den: np.cos(2 * np.pi * (num % den) / den)
s_ = lambda num, den: np.sin(2 * np.pi * (num % den) / den)

def stage_addr():
    a = np.zeros((64, 4), np.uint32)
    for l in range(64):
        k1, h = l & 15, l >> 4
        for mu in range(3):
            q = QOF.get((k1, 4 * mu + h), NQ)
            a[l, mu] = q * 128 + sw(q) * 16
    return a

def p1_tables():
    t = {}
    t["B1c"] = frag(lambda n, g, j: c_((8*g+j)*n, 24) if (8*g+j < 24 and n <= 12) else 0.0)
    t["B1s"] = frag(lambda n, g, j: -s_((8*g+j)*n, 24) if (8*g+j < 24 and n <= 12) else 0.0)
    t["TW0c"] = frag(lambda n, h, r: c_((4*h+r)*n, 576), 4)
    t["TW0s"] = frag(lambda n, h, r: s_((4*h+r)*n, 576), 4)
    t["TW1c"] = frag(lambda n, h, r: c_((16+4*(h&1)+r)*n, 576), 4)
    t["TW1s"] = frag(lambda n, h, r: s_((16+4*(h&1)+r)*n, 576), 4)
    def a2(mu, m, d2, c):
        k2 = 8*mu + (m >> 1); cp = m & 1
        if cp == 0: return c_(d2*k2, 24) if c == 0 else s_(d2*k2, 24)
        sg = -1.0 if k2 >= 12 else 1.0
        return sg * (-s_(d2*k2, 24) if c == 0 else c_(d2*k2, 24))
    for mu in range(3):
        t[f"A2_{mu}_0"] = frag(lambda m, g, j: a2(mu, m, 4*g+(j>>1), j&1))
        t[f"A2_{mu}_a"] = frag(lambda m, g, j: a2(mu, m, 16+4*(g&1)+(j>>1), j&1) if g < 2 else 0.0)
        t[f"A2_{mu}_b"] = frag(lambda m, g, j: a2(mu, m, 16+4*(g&1)+(j>>1), j&1) if g >= 2 else 0.0)
    return t
P1_ORDER = ["ADDR", "B1c", "B1s", "TW0c", "TW0s", "TW1c", "TW1s"] + [f"A2_{mu}_{v}" for mu in range(3) for v in "0ab"]

def p3_tables():
    t = {}
    def b3(d2, k2, c, cp):
        sg = -1.0 if k2 >= 12 else 1.0
        if cp == 0: return c_(k2*d2, 24) if c == 0 else sg * s_(k2*d2, 24)
        return -s_(k2*d2, 24) if c == 0 else sg * c_(k2*d2, 24)
    k2_32 = lambda g, j: 2*(g + 4*(j >> 2)) + ((j >> 1) & 1)
    k2_16 = lambda g, j: 2*(8 + g) + (j >> 1)
    for v in "0ab":
        def d2of(n):
            if v == "0": return n
            if v == "a": return 16 + n if n < 8 else None
            return 16 + (n - 8) if n >= 8 else None
        for cp in range(2):
            t[f"B3_{v}_{cp}_32"] = frag(lambda n, g, j: 0.0 if d2of(n) is None else b3(d2of(n), k2_32(g, j), j&1, cp))
            t[f"B3_{v}_{cp}_16"] = frag(lambda n, g, j: 0.0 if d2of(n) is None else b3(d2of(n), k2_16(g, j), j&1, cp), 4)
    t["TW0c"] = frag(lambda n, h, r: c_((4*h+r)*n, 576), 4)
    t["TW0s"] = frag(lambda n, h, r: s_((4*h+r)*n, 576), 4)
    t["TW1c"] = frag(lambda n, h, r: c_((4*h+r)*(16+(n&7)), 576), 4)
    t["TW1s"] = frag(lambda n, h, r: s_((4*h+r)*(16+(n&7)), 576), 4)
    def b4(d1, k1, c):
        if k1 > 12 or d1 >= 24: return 0.0
        return c_(k1*d1, 24) if c == 0 else s_(k1*d1, 24)
    t["B4_0"] = frag(lambda n, g, j: b4(n, 4*g+(j>>1), j&1))
    t["B4_1"] = frag(lambda n, g, j: b4(16+n, 4*g+(j>>1), j&1))
    return t
P3_ORDER = ["ADDR"] + [x for v in "0ab" for x in (f"B3_{v}_0_32", f"B3_{v}_1_32", f"B3_{v}_x_16")] + ["TW0c", "TW0s", "TW1c", "TW1s", "B4_0", "B4_1"]

def p2_tables():
    t = {}
    for w in range(4):
        for kap in range(4):
            t[f"F1re_{w}_{kap}"] = frag(lambda n, g, j: (c_ if (j&1) == 0 else s_)((16*kap+4*g+(j>>1))*(16*w+n), 64))
            t[f"F1im_{w}_{kap}"] = frag(lambda n, g, j: (-s_((16*kap+4*g+(j>>1))*(16*w+n), 64) if (j&1) == 0 else c_((16*kap+4*g+(j>>1))*(16*w+n), 64)))
    for tl in range(2):
        for ks in range(2):
            t[f"F2re_{tl}_{ks}"] = frag(lambda n, g, j: (c_ if (j&1) == 0 else s_)((16*ks+4*g+(j>>1))*(16*tl+n), 32))
            t[f"F2im_{tl}_{ks}"] = frag(lambda n, g, j: (-s_((16*ks+4*g+(j>>1))*(16*tl+n), 32) if (j&1) == 0 else c_((16*ks+4*g+(j>>1))*(16*tl+n), 32)))
    s2 = np.arange(32)[:, None]; f1 = np.arange(64)[None, :]
    t["TWc"] = c_(s2*f1, 2048); t["TWs"] = s_(s2*f1, 2048)
    return t

def w_tables():
    tb = np.zeros((4, 64, 8), np.uint32)
    for tau in range(4):
        seg = min(tau, 2)
        if tau < 3:
            lines = [(k1, kp) for kp in (2*tau, 2*tau+1) for k1 in range(13)] + [(k1, kp) for kp in (11-2*tau, 10-2*tau) for k1 in range(1, 12)]
        else:
            lines = [(0, 6)] * 48
        assert len(lines) == 48
        for rd in range(6):
            for l in range(64):
                k1, kp = lines[8*rd + (l >> 3)]
                col = (l >> 2) & 1; phi = l & 3
                kap = kappa(k1, 2*kp + col) - 96*seg
                assert 0 <= kap <= 96, (tau, k1, kp, col, kap)
                off = phi*208 + 2*(phi & 1) + 2*kap
                tb[tau, l, rd] = off | (QOF[(k1, kp)] << 16)
    return tb

TAG = np.array([0x00000001, 0x00010001, 0x00010000, 0x00000000], np.uint32)
TMASK = np.uint32(0x00010001)
def tag(gr, inv=False):
    t = TAG ^ TMASK if inv else TAG
    return (gr & ~TMASK) | t
```

```python
import sys, numpy as np
from asmlib import Asm
from design import *

NAME = "concat_heads__ssm_conv_s4d__spectral_gfnet__prompt"
PROF = "--prof" in sys.argv
OUT = [a for a in sys.argv[1:] if not a.startswith("--")]
OUT = OUT[0] if OUT else "k.s"
STAMP_BASE = 0x8000000

def build_tables():
    sa = stage_addr()
    p1 = p1_tables(); p3 = p3_tables(); p2 = p2_tables()
    def enc(t, name):
        if name == "ADDR": return sa
        if name.startswith("TW"): return f32_dw(t[name])
        if name.endswith("_x_16"):
            return np.concatenate([frag_dw(t[name.replace("_x_", "_0_")]), frag_dw(t[name.replace("_x_", "_1_")])], 1)
        return frag_dw(t[name])
    P1 = np.concatenate([enc(p1, n).reshape(-1) for n in P1_ORDER])
    P3 = np.concatenate([enc(p3, n).reshape(-1) for n in P3_ORDER])
    f1 = [frag_dw(p2[f"F1re_{w}_{k}"]).reshape(-1) for w in range(4) for k in range(4)]
    f2 = [frag_dw(p2[f"F2re_{t}_{k}"]).reshape(-1) for t in range(2) for k in range(2)]
    tw = np.zeros((2, 32, 68), np.uint32)
    tw[0, :, :64] = f32_dw(p2["TWc"]); tw[1, :, :64] = f32_dw(p2["TWs"])
    P2 = np.concatenate(f1 + f2 + [tw.reshape(-1)])
    P2 = np.concatenate([P2, np.zeros(10240 - len(P2), np.uint32)])
    wt = w_tables().copy()
    lane7 = ((np.arange(64) & 7) * 16).astype(np.uint32)[None, :, None]
    wt = (wt & 0xffff) | ((((wt >> 16) * 128) + lane7) << 16)
    WT = wt.reshape(4, 64, 2, 4).transpose(0, 2, 1, 3).reshape(-1)
    assert len(P1) == 4096 and len(P3) == 4096 and len(P2) == 10240 and len(WT) == 2048
    return np.concatenate([P1, P2, P3, WT]).astype(np.uint32)
T_P1, T_P2, T_P3, T_W = 0, 16384, 16384 + 40960, 16384 + 40960 + 16384

R0, R1, R2 = 0, 20480, 38912
L_F1, L_F2, L_TW = R2, R2 + 16384, R2 + 20480
KT_PITCH = 544
KT_SZ = 63 * KT_PITCH
A_TAIL = 2 * KT_SZ
K_SZ = 4576
A_SLOT = A_TAIL + 2 * K_SZ
U_PITCH = 4160
A_PART = 4 * U_PITCH
W_LDS_A = 34304
LINEB = NQ * 128

k = Asm()
nst = [0]
def stamp(i):
    if PROF: k(f"s_memrealtime s[{64+2*i}:{65+2*i}]")
def v(a, n=1): return f"v{a}" if n == 1 else f"v[{a}:{a+n-1}]"
def mfma(d, a, b, c=None, k16=False):
    cs = "0" if c is None else v(c, 4)
    if k16: k(f"v_mfma_f32_16x16x16_bf16 {v(d,4)}, {v(a,2)}, {v(b,2)}, {cs}")
    else: k(f"v_mfma_f32_16x16x32_bf16 {v(d,4)}, {v(a,4)}, {v(b,4)}, {cs}")
def tag_ins(d, inv=False):
    a, b, c, e = (d+2, d+3, d, d+1) if inv else (d, d+1, d+2, d+3)
    return [f"v_and_or_b32 v{a}, v{a}, s97, 1", f"v_or_b32 v{b}, s99, v{b}", f"v_and_or_b32 v{c}, v{c}, -2, s98", f"v_and_b32 v{e}, s97, v{e}"]
def emit(lst):
    for x in lst: k(x)
def check_ins(d, acc, inv=False):
    a, b, c, e = (d+2, d+3, d, d+1) if inv else (d, d+1, d+2, d+3)
    return [f"v_bitop3_b32 v{acc}, v{a}, v{c}, 1 bitop3:0xdb", f"v_bitop3_b32 v{acc}, v{acc}, v{b}, v{e} bitop3:0xfb"]
def poll(name, loads, grans, tmp, inv=False, issued=False, sleep=1, restore="-1"):
    if not issued: emit(loads)
    k(f"{name}_chk:")
    k("s_waitcnt vmcnt(0)")
    for i, g in enumerate(grans):
        emit(check_ins(g, tmp if i == 0 else tmp+1, inv))
        if i: k(f"v_or_b32 v{tmp}, v{tmp}, v{tmp+1}")
    k(f"v_and_b32 v{tmp}, s99, v{tmp}")
    k(f"v_cmp_ne_u32 vcc, 0, v{tmp}")
    k(f"s_cbranch_vccz {name}_ok")
    k("s_cmp_eq_u32 s96, 0")
    k(f"s_cbranch_scc1 {name}_ok")
    k("s_sub_u32 s96, s96, 1")
    k("s_wqm_b64 exec, vcc")
    if sleep: k(f"s_sleep {sleep}")
    emit(loads)
    k(f"s_branch {name}_chk")
    k(f"{name}_ok:")
    k(f"s_mov_b64 exec, {restore}")
def tw_ins(re, im, c, s, out, t, conjW=False):
    L = []
    for pp in range(2):
        r_, i_, c_2, s_2 = v(re+2*pp, 2), v(im+2*pp, 2), v(c+2*pp, 2), v(s+2*pp, 2)
        tt = v(t, 2)
        n1 = " neg_lo:[1,0,0] neg_hi:[1,0,0]"
        L += [f"v_pk_mul_f32 {tt}, {r_}, {c_2}", f"v_pk_fma_f32 {tt}, {i_}, {s_2}, {tt}" + (n1 if conjW else ""),
              f"v_pk_mul_f32 {i_}, {i_}, {c_2}", f"v_pk_fma_f32 {i_}, {r_}, {s_2}, {i_}" + ("" if conjW else n1)]
        ng = "-" if conjW else ""
        L += [f"v_cvt_pk_bf16_f32 v{out+2*pp}, v{t}, {ng}v{im+2*pp}", f"v_cvt_pk_bf16_f32 v{out+2*pp+1}, v{t+1}, {ng}v{im+2*pp+1}"]
    return L
def interleave(major, minor):
    n = len(major); j = 0
    for i, m in enumerate(major):
        m() if callable(m) else k(m)
        tgt = (i + 1) * len(minor) // n
        while j < tgt:
            k(minor[j]); j += 1
def tbl_addr(off_expr_sreg, const):
    k(f"s_add_u32 s38, s34, {off_expr_sreg}")
    k("s_addc_u32 s39, s35, 0")
    if const:
        k(f"s_add_u32 s38, s38, {const}")
        k("s_addc_u32 s39, s39, 0")
    k("v_mov_b32 v5, s39")
    k("v_add_co_u32 v4, vcc, s38, v3")
    k("v_addc_co_u32 v5, vcc, 0, v5, vcc")
def dma_p2():
    k("s_mul_i32 s36, s3, 5120")
    tbl_addr("s36", T_P2)
    k(f"s_add_u32 m0, s36, {R2}")
    for i in range(4): k(f"global_load_lds_dwordx4 v[4:5], off offset:{1024*i}")
    k("v_add_co_u32 v4, vcc, 0x1000, v4")
    k("v_addc_co_u32 v5, vcc, 0, v5, vcc")
    k(f"s_add_u32 m0, s36, {R2+4096}")
    k("global_load_lds_dwordx4 v[4:5], off")
def dma_16k(toff, lds):
    k("s_lshl_b32 s36, s3, 11")
    tbl_addr("s36", toff)
    k(f"s_add_u32 m0, s36, {lds}")
    for i in range(2): k(f"global_load_lds_dwordx4 v[4:5], off offset:{1024*i}")
def row_sa():
    k("s_lshr_b32 s37, s2, 3")
    k("s_lshl_b32 s37, s37, 7")
    k("s_and_b32 s36, s2, 7")
    k("s_lshl_b32 s36, s36, 2")
    k("s_add_u32 s37, s37, s36")
    k("s_and_b32 s36, s3, 1")
    k("s_lshl_b32 s36, s36, 6")
    k("s_add_u32 s37, s37, s36")
    k("s_lshr_b32 s36, s3, 1")
    k("s_add_u32 s37, s37, s36")
def stage_addrs():
    k("s_lshl_b32 s36, s3, 3")
    for mu in range(3):
        k(f"v_xor_b32 v{58+2*mu}, s36, v{64+mu}")
        k(f"v_xor_b32 v{59+2*mu}, 64, v{58+2*mu}")
def lin_addrs():
    k("v_lshrrev_b32 v1, 4, v0")
    k("v_xor_b32 v1, v1, v0")
    k("v_and_b32 v1, 7, v1")
    k("v_and_b32 v4, 0x1f8, v0")
    k("v_or_b32 v1, v1, v4")
    k("v_lshlrev_b32 v1, 4, v1")
    k("v_lshlrev_b32 v4, 4, v0")
    k("v_add_u32 v5, 0x2000, v4")
    k("v_add_u32 v6, 0x4000, v4")
    k(f"s_mul_i32 s36, s2, {LINEB}")
    k("s_add_u32 s38, s32, s36")
    k("s_addc_u32 s39, s33, 0")
def end_wave():
    if PROF: k("s_branch L_prof")
    else: k("s_endpgm")

k("s_cmp_ge_u32 s2, 512")
k("s_cbranch_scc1 L_exit")
if PROF:
    for i in range(16): k(f"s_mov_b32 s{64+2*i}, 0")
stamp(0)
k("s_load_dwordx16 s[8:23], s[0:1], 0")
k("s_load_dwordx8 s[24:31], s[0:1], 64")
k("s_load_dwordx2 s[32:33], s[0:1], 96")
k("s_getpc_b64 s[34:35]")
k("L_pc:")
k("s_add_u32 s34, s34, L_tables-L_pc")
k("s_addc_u32 s35, s35, 0")
k("v_lshrrev_b32 v1, 6, v0")
k("v_and_b32 v2, 63, v0")
k("v_readfirstlane_b32 s3, v1")
k("v_lshlrev_b32 v3, 4, v2")
k("s_mov_b32 s96, 0x4000")
k("s_mov_b32 s97, 0xfffefffe")
k("s_mov_b32 s98, 0x10000")
k("s_mov_b32 s99, 0x10001")
k("s_cmp_ge_u32 s2, 256")
k("s_cbranch_scc1 L_A2")
k("s_cmp_ge_u32 s2, 128")
k("s_cbranch_scc1 L_AUX")

k("s_setprio 2")
dma_16k(T_P1, R0)
row_sa()
k("v_cmp_lt_u32 vcc, 7, v2")
k("v_mov_b32 v7, 35712")
k("v_cndmask_b32 v6, 0, v7, vcc")
k("v_add_u32 v6, v6, v3")
k("v_add_u32 v7, v7, v3")
k("s_mul_i32 s36, s37, 1152")
k("s_mul_i32 s40, s3, 2304")
k(f"s_add_u32 s40, s40, {R1}")
k("s_mov_b32 m0, s40")
k("s_waitcnt lgkmcnt(0)")
k("s_add_u32 s38, s22, s36")
k("s_addc_u32 s39, s23, 0")
k("global_load_lds_dwordx4 v3, s[38:39]")
k("global_load_lds_dwordx4 v6, s[38:39] offset:1024")
k("s_mov_b64 exec, 0xffff")
k("global_load_lds_dwordx4 v7, s[38:39] offset:2048")
k("s_mov_b64 exec, -1")
k("v_lshrrev_b32 v8, 4, v2")
k("v_cmp_ne_u32 vcc, 3, v8")
k("v_bfe_u32 v9, v2, 2, 2")
k("v_cndmask_b32 v8, 0, v8, vcc")
k("v_lshl_add_u32 v8, v8, 3, v9")
k("v_mul_u32_u24 v8, 48, v8")
k("v_add_u32 v8, s40, v8")
k("v_and_b32 v9, 3, v2")
k("v_lshl_add_u32 v6, v9, 3, v8")
k("v_and_b32 v9, 1, v2")
k("v_lshl_add_u32 v7, v9, 3, v8")
k("v_bfe_u32 v9, v2, 1, 1")
k("v_mul_u32_u24 v9, 1152, v9")
k("v_add_u32 v7, v7, v9")
k("s_waitcnt vmcnt(3)")
k("s_barrier")
for i in range(16): k(f"ds_read_b128 {v(64+4*i,4)}, v3 offset:{R0+1024*i}")
dma_p2()
stage_addrs()
k("s_waitcnt lgkmcnt(0)")
k("s_barrier")
k("s_waitcnt vmcnt(5)")
stamp(1)
k("ds_read_b64_tr_b16 v[8:9], v6")
k("ds_read_b64_tr_b16 v[10:11], v6 offset:192")
k("ds_read_b64_tr_b16 v[12:13], v6 offset:1152")
k("ds_read_b64_tr_b16 v[14:15], v6 offset:1344")
k("ds_read_b64_tr_b16 v[16:17], v7 offset:32")
k("ds_read_b64_tr_b16 v[18:19], v7 offset:224")
for t in range(3):
    mfma(20+8*t, 8+4*t, 68); mfma(24+8*t, 8+4*t, 72)
A2 = lambda mu, vv: 92 + 12*mu + 4*vv
emit(tw_ins(20, 24, 76, 80, 44, 56))
interleave([lambda mu=mu: mfma(8+4*mu, A2(mu, 0), 44) for mu in range(3)], tw_ins(28, 32, 76, 80, 48, 56))
interleave([lambda mu=mu: mfma(20+4*mu, A2(mu, 0), 48) for mu in range(3)], tw_ins(36, 40, 84, 88, 52, 56))
for mu in range(3):
    mfma(8+4*mu, A2(mu, 1), 52, 8+4*mu); mfma(20+4*mu, A2(mu, 2), 52, 20+4*mu)
lin_addrs()
for mu in range(3):
    for col in range(2):
        o = 32 + 4*mu + 2*col
        k(f"v_cvt_pk_bf16_f32 v{o}, v{8+4*mu+2*col}, v{9+4*mu+2*col}")
        k(f"v_cvt_pk_bf16_f32 v{o+1}, v{20+4*mu+2*col}, v{21+4*mu+2*col}")
        k(f"ds_write_b64 v{58+2*mu+col}, {v(o,2)}")
k("s_waitcnt vmcnt(0) lgkmcnt(0)")
k("s_barrier")
for i in range(3): k(f"ds_read_b128 {v(8+4*i,4)}, v1 offset:{8192*i}")
for i in range(2):
    emit(tag_ins(8+4*i)); k(f"global_store_dwordx4 v{4+i}, {v(8+4*i,4)}, s[38:39] sc1")
k("v_cmp_gt_u32 vcc, 136, v0")
emit(tag_ins(16))
k("s_and_saveexec_b64 s[40:41], vcc")
k("s_cbranch_execz L_x1done")
with k.cond(): k("global_store_dwordx4 v6, v[16:19], s[38:39] sc1")
k("L_x1done:")
k("s_mov_b64 exec, -1")
stamp(2)

k("L_P2:")
k("s_and_b32 s46, s3, 3")
k("s_lshr_b32 s47, s3, 2")
k("s_lshl_b32 s36, s46, 12")
k("v_add_u32 v4, s36, v3")
for i in range(4): k(f"ds_read_b128 {v(64+4*i,4)}, v4 offset:{L_F1+1024*i}")
for i in range(4): k(f"ds_read_b128 {v(96+4*i,4)}, v3 offset:{L_F2+1024*i}")
k("v_lshrrev_b32 v5, 4, v2")
k("v_and_b32 v6, 15, v2")
k("v_mul_u32_u24 v7, 1088, v5")
k("v_lshl_add_u32 v7, v6, 2, v7")
k("s_lshl_b32 s36, s46, 6")
k(f"s_add_u32 s48, s36, {L_TW}")
k("v_add_u32 v7, s48, v7")
for cs in range(2):
    for mu in range(2):
        d = 32 + 8*cs + 4*mu
        if cs or mu: k(f"v_add_u32 v7, 4352, v7")
        k(f"ds_read2_b32 {v(d,2)}, v7 offset1:68")
        k(f"ds_read2_b32 {v(d+2,2)}, v7 offset0:136 offset1:204")
k("v_lshrrev_b32 v8, 2, v6")
k("v_lshl_add_u32 v9, v5, 3, v8")
k("v_lshl_add_u32 v10, v8, 3, v5")
k("v_and_b32 v8, 3, v2")
k("v_lshlrev_b32 v8, 4, v8")
k(f"s_movk_i32 s36, {LINEB}")
k("v_mad_u32_u24 v1, v9, s36, v8")
k("v_mad_u32_u24 v11, v10, s36, v8")
k(f"s_mul_i32 s36, s46, {32*LINEB}")
k("s_lshl_b32 s37, s2, 7")
k("s_add_u32 s36, s36, s37")
k("s_lshl_b32 s37, s47, 6")
k("s_add_u32 s36, s36, s37")
k("s_add_u32 s40, s32, s36")
k("s_addc_u32 s41, s33, 0")
k(f"s_add_u32 s42, s40, {4*LINEB}")
k("s_addc_u32 s43, s41, 0")
k(f"s_add_u32 s50, s40, {WB}")
k("s_addc_u32 s51, s41, 0")
k(f"s_add_u32 s52, s42, {WB}")
k("s_addc_u32 s53, s43, 0")
k("v_mul_u32_u24 v2, 272, v6")
k("v_lshl_add_u32 v2, v5, 4, v2")
k("v_add_u32 v2, s48, v2")
k("s_lshl_b32 s36, s47, 13")
k("v_add_u32 v3, s36, v3")
k("s_lshl_b32 s36, s46, 10")
k("v_add_u32 v4, s36, v3")
sc2 = np.float32(2.0/(S*D)).view(np.uint32); sc1 = np.float32(1.0/(S*D)).view(np.uint32)
k("s_lshl_b32 s36, s2, 1")
k("s_add_u32 s36, s36, s47")
k(f"s_mov_b32 s54, {hex(sc2)}")
k("s_cmp_eq_u32 s36, 0")
k(f"s_cselect_b32 s54, {hex(sc1)}, s54")
k(f"s_cmp_eq_u32 s36, {2*Q288}")
k(f"s_cselect_b32 s54, {hex(sc1)}, s54")
k(f"s_cmp_eq_u32 s36, {2*Q288+1}")
k("s_cselect_b32 s54, 0, s54")
k("s_mov_b32 s55, 0x8000")
xl = ["global_load_dwordx4 v[56:59], v1, s[40:41] sc1", "global_load_dwordx4 v[60:63], v1, s[42:43] sc1",
      "global_load_dwordx4 v[48:51], v11, s[50:51] sc1", "global_load_dwordx4 v[52:55], v11, s[52:53] sc1"]
k("s_waitcnt vmcnt(0)")
stamp(3)
emit(xl)
for i in range(16): k(f"v_pk_add_u16 v{80+i}, v{64+i}, s55 op_sel:[1,0] op_sel_hi:[0,1]")
for i in range(16): k(f"v_pk_add_u16 v{112+i}, v{96+i}, s55 op_sel:[1,0] op_sel_hi:[0,1]")
for i in range(16): k(f"v_mul_f32 v{32+i}, s54, v{32+i}")
k("v_mov_b32 v16, s98"); k("v_mov_b32 v17, 0"); k("v_mov_b32 v18, 1"); k("v_mov_b32 v19, s99")
poll("L_px", xl, [56, 60, 48, 52], 6, issued=True)
stamp(4)
k(f"ds_write_b128 v4, v[56:59] offset:{R1}")
k(f"ds_write_b128 v4, v[60:63] offset:{R1+4096}")
k("global_store_dwordx4 v11, v[16:19], s[50:51] sc1")
k("global_store_dwordx4 v11, v[16:19], s[52:53] sc1")
k("s_waitcnt lgkmcnt(0)")
k("s_barrier")
dreg = {(0,0): 56, (0,1): 60, (0,2): 24, (0,3): 28, (1,0): 8, (1,1): 12, (1,2): 56, (1,3): 60}
rd = lambda mu, kp: k(f"ds_read_b128 {v(dreg[mu,kp],4)}, v3 offset:{R1+1024*(4*mu+kp)}")
for key in [(0,0),(0,1),(0,2),(0,3),(1,0),(1,1)]: rd(*key)
for kp in range(4):
    mfma(16, dreg[0,kp], 64+4*kp, 16 if kp else None); mfma(20, dreg[0,kp], 80+4*kp, 20 if kp else None)
    if kp < 2: rd(1, 2+kp)
m1 = []
for kp in range(4):
    m1 += [lambda kp=kp: mfma(24, dreg[1,kp], 64+4*kp, 24 if kp else None), lambda kp=kp: mfma(28, dreg[1,kp], 80+4*kp, 28 if kp else None)]
m1[0](); m1[1]()
interleave(m1[2:], tw_ins(16, 20, 32, 40, 32, 6))
F2re = lambda t, ks: 96 + 8*t + 4*ks
F2im = lambda t, ks: 112 + 8*t + 4*ks
acc2 = {0: (16, 20), 1: (8, 12)}
unp = lambda src, wr, wi: [x for r in range(4) for x in (f"v_lshlrev_b32 v{wr+r}, 16, v{src+r}", f"v_and_b32 v{wi+r}, 0xffff0000, v{src+r}")]
s2k = lambda ks, T: [f for t in range(2) for f in (lambda t=t: mfma(acc2[t][0], F2re(t, ks), T, acc2[t][0] if ks else None), lambda t=t: mfma(acc2[t][1], F2im(t, ks), T, acc2[t][1] if ks else None))]
interleave(s2k(0, 32), unp(48, 56, 60))
emit(tw_ins(24, 28, 36, 44, 36, 6))
k("ds_read_b128 v[24:27], v2")
k("ds_read_b128 v[28:31], v2 offset:8704")
interleave(s2k(1, 36), unp(52, 40, 44))
k("ds_read_b128 v[48:51], v2 offset:4352")
k("ds_read_b128 v[52:55], v2 offset:13056")
emit(tw_ins(16, 20, 56, 60, 56, 6, conjW=True))
acc3 = {0: (32, 36), 1: (16, 20)}
s3k = lambda ks, Y: [f for t in range(2) for f in (lambda t=t: mfma(acc3[t][0], Y, F2re(t, ks), acc3[t][0] if ks else None), lambda t=t: mfma(acc3[t][1], Y, F2im(t, ks), acc3[t][1] if ks else None))]
interleave(s3k(0, 56), tw_ins(8, 12, 40, 44, 40, 6, conjW=True))
for f in s3k(1, 40): f()
emit(tw_ins(32, 36, 24, 28, 24, 6))
k(f"ds_write_b128 v4, v[24:27] offset:{R0}")
emit(tw_ins(16, 20, 48, 52, 48, 6))
k(f"ds_write_b128 v4, v[48:51] offset:{R0+4096}")
k("s_waitcnt lgkmcnt(0)")
k("s_barrier")
for i in range(8): k(f"ds_read_b128 {v(96+4*i,4)}, v3 offset:{R0+1024*i}")
for nu in range(2):
    for kp in range(4):
        mfma(8+8*nu, 64+4*kp, 96+16*nu+4*kp, 8+8*nu if kp else None); mfma(12+8*nu, 80+4*kp, 96+16*nu+4*kp, 12+8*nu if kp else None)
for nu in range(2):
    for r in range(4): k(f"v_cvt_pk_bf16_f32 v{24+4*nu+r}, v{8+8*nu+r}, v{12+8*nu+r}")
    emit(tag_ins(24+4*nu, inv=True))
    k(f"global_store_dwordx4 v1, {v(24+4*nu,4)}, s[{40+2*nu}:{41+2*nu}] sc1")
stamp(5)
k("s_cmp_ge_u32 s2, 128")
k("s_cbranch_scc1 L_end")

k("v_and_b32 v2, 63, v0")
k("v_lshlrev_b32 v3, 4, v2")
dma_16k(T_P3, R1)
lin_addrs()
k("s_movk_i32 s36, 136")
k("v_cmp_gt_u32 vcc, s36, v0")
k("v_cndmask_b32 v6, v4, v6, vcc")
k("s_mov_b64 s[44:45], vcc")
row_sa()
k("s_waitcnt vmcnt(0)")
stamp(6)
zl = [f"global_load_dwordx4 {v(8+4*i,4)}, v{4+i}, s[38:39] sc1" for i in range(3)]
emit(zl)
k("s_barrier")
for i in range(16): k(f"ds_read_b128 {v(64+4*i,4)}, v3 offset:{R1+1024*i}")
k("v_mov_b32 v20, 0")
k("v_lshlrev_b32 v21, 2, v2")
k("v_and_b32 v21, 0x7f, v21")
k(f"ds_write_b32 v21, v20 offset:{R0+NQ*128}")
stage_addrs()
k("s_mul_i32 s40, s3, 2304")
k(f"s_add_u32 s40, s40, {R2}")
k("v_and_b32 v20, 15, v2")
k("v_mul_u32_u24 v20, 48, v20")
k("v_add_u32 v20, s40, v20")
k("v_lshrrev_b32 v21, 4, v2")
k("v_lshl_add_u32 v56, v21, 3, v20")
k("v_and_b32 v21, 1, v21")
k("v_lshl_add_u32 v57, v21, 3, v20")
k("v_lshrrev_b32 v21, 5, v2")
k("v_mul_u32_u24 v21, 1152, v21")
k("v_add_u32 v57, v57, v21")
poll("L_pz", zl, [8, 12, 16], 20, inv=True, issued=True)
stamp(7)
k("ds_write_b128 v1, v[8:11]")
k("ds_write_b128 v1, v[12:15] offset:8192")
k("s_mov_b64 exec, s[44:45]")
k("s_cbranch_execz L_zw")
with k.cond(): k("ds_write_b128 v1, v[16:19] offset:16384")
k("L_zw:")
k("s_mov_b64 exec, -1")
k("s_waitcnt lgkmcnt(0)")
k("s_barrier")
for i, d in enumerate([20, 24, 22, 26, 28, 30]): k(f"ds_read_b64 {v(d,2)}, v{58+i}")
k("v_cmp_lt_u32 vcc, 7, v2")
k(f"v_mov_b32 v5, {32*2304-1152}")
k("v_add_u32 v1, s40, v3")
k("v_cndmask_b32 v4, 0, v5, vcc")
k("v_add_u32 v4, v4, v3")
k("v_add_u32 v5, v5, v3")
k("s_mul_i32 s36, s37, 2304")
k("s_add_u32 s36, s36, 1152")
k("s_add_u32 s38, s28, s36")
k("s_addc_u32 s39, s29, 0")
k("v_swap_b32 v21, v24"); k("v_swap_b32 v23, v26"); k("v_swap_b32 v29, v30")
B3 = lambda vv, cp: 68 + 12*vv + 4*cp
B316 = lambda vv, cp: 76 + 12*vv + 2*cp
mfma(32, 20, B3(0,0)); mfma(36, 20, B3(0,1)); mfma(32, 28, B316(0,0), 32, True); mfma(36, 28, B316(0,1), 36, True)
mfma(40, 24, B3(0,0)); mfma(44, 24, B3(0,1)); mfma(40, 30, B316(0,0), 40, True); mfma(44, 30, B316(0,1), 44, True)
ms = [lambda: mfma(48, 20, B3(1,0)), lambda: mfma(52, 20, B3(1,1)), lambda: mfma(48, 28, B316(1,0), 48, True), lambda: mfma(52, 28, B316(1,1), 52, True),
      lambda: mfma(48, 24, B3(2,0), 48), lambda: mfma(52, 24, B3(2,1), 52), lambda: mfma(48, 30, B316(2,0), 48, True), lambda: mfma(52, 30, B316(2,1), 52, True)]
interleave(ms, tw_ins(32, 36, 104, 108, 8, 6) + tw_ins(40, 44, 104, 108, 12, 6))
interleave([lambda: mfma(20, 8, 120), lambda: mfma(24, 8, 124), lambda: mfma(32, 12, 120), lambda: mfma(36, 12, 124)], ["s_nop 0"]*4)
emit(tw_ins(48, 52, 112, 116, 16, 6))
mfma(40, 16, 120); mfma(44, 16, 124)
def outw(acc, areg, off):
    k(f"v_cvt_pk_bf16_f32 v{acc}, v{acc}, v{acc+1}")
    k(f"v_cvt_pk_bf16_f32 v{acc+1}, v{acc+2}, v{acc+3}")
    return f"ds_write_b64 v{areg}, {v(acc,2)} offset:{off}"
k(outw(20, 56, 0)); k(outw(32, 56, 1152))
w1 = [outw(24, 56, 768), outw(36, 56, 1920)]
k(outw(40, 57, 32))
w1.append(outw(44, 57, 800))
k("s_mov_b32 exec_lo, 0x00ff00ff"); k("s_mov_b32 exec_hi, 0x00ff00ff")
emit(w1)
k("s_mov_b64 exec, -1")
k("s_waitcnt lgkmcnt(0)")
for i in range(3): k(f"ds_read_b128 {v(8+4*i,4)}, v1 offset:{1024*i}")
k("global_store_dwordx4 v3, v[8:11], s[38:39]")
k("global_store_dwordx4 v4, v[12:15], s[38:39] offset:1024")
k("s_mov_b64 exec, 0xffff")
k("global_store_dwordx4 v5, v[16:19], s[38:39] offset:2048")
k("L_end:")
end_wave()

def tile_setup():
    k("s_and_b32 s57, s56, 31")
    k("s_lshr_b32 s58, s56, 5")
    k("s_lshl_b32 s36, s3, 4")
    k("v_lshlrev_b32 v120, 4, v0")
    k("v_xor_b32 v120, s36, v120")
    k("v_and_b32 v4, 7, v0")
    k("v_xor_b32 v5, s3, v4")
    k("v_lshlrev_b32 v5, 4, v5")
    k("v_lshl_or_b32 v5, v4, 10, v5")
    k("v_bfe_u32 v6, v0, 3, 3")
    k("v_lshl_or_b32 v121, v6, 1, v5")
    k("v_lshrrev_b32 v6, 3, v0")
    k("v_lshlrev_b32 v4, 4, v4")
    k("v_lshl_or_b32 v122, v6, 12, v4")
    k("s_movk_i32 s36, 1152")
    k("v_mad_u32_u24 v7, v6, s36, v4")
def tile_load():
    k(f"s_mul_i32 s36, s57, {64*1152}")
    k("s_lshl_b32 s37, s58, 7")
    k("s_add_u32 s36, s36, s37")
    k("s_add_u32 s38, s8, s36")
    k("s_addc_u32 s39, s9, 0")
    k("global_load_dwordx4 v[124:127], v7, s[38:39]")
    k("s_lshl_b32 s36, s58, 18")
    k("s_lshl_b32 s37, s57, 7")
    k("s_add_u32 s36, s36, s37")
    k(f"s_add_u32 s36, s36, {UB}")
    k("s_add_u32 s60, s32, s36")
    k("s_addc_u32 s61, s33, 0")
def tile_in_code(t0):
    k(f"v_add_u32 v120, {A_TAIL}, v120")
    k(f"v_add_u32 v121, {A_TAIL}, v121")
    k("ds_write_b128 v120, v[124:127]")
    k("s_waitcnt lgkmcnt(0)")
    k("s_barrier")
    for j in range(8): k(f"ds_read_u16 v{t0+j}, v121 offset:{128*j}")
    for j in range(4): k(f"v_lshl_or_b32 v{124+j}, v{t0+2*j+1}, 16, v{t0+2*j}")
    emit(tag_ins(124))
    k("global_store_dwordx4 v122, v[124:127], s[60:61] sc1")

k("L_AUX:")
k("s_cmp_ge_u32 s2, 145")
k("s_cbranch_scc1 L_aux1")
k("s_setprio 2")
with k.cond(): dma_p2()
k("L_aux1:")
k("s_sub_u32 s56, s2, 145")
k("s_cmp_lt_u32 s56, 32")
k("s_cselect_b32 s59, 1, 0")
k("s_add_u32 s56, s56, 256")
tile_setup()
k("s_cmp_lt_u32 s3, 4")
k("s_cbranch_scc1 L_aux_lo")
k("s_sub_u32 s46, s3, 4")
k("s_lshl_b32 s36, s46, 11")
tbl_addr("s36", T_W)
k("global_load_dwordx4 v[64:67], v[4:5], off")
k("global_load_dwordx4 v[68:71], v[4:5], off offset:1024")
k("v_mul_u32_u24 v8, 79, v2")
k("v_lshrrev_b32 v8, 10, v8")
k("v_mul_u32_u24 v9, 370, v8")
k("v_add_u32 v9, v9, v3")
k("v_and_b32 v8, 1, v8")
k("v_lshlrev_b32 v8, 1, v8")
k("v_sub_u32 v9, v9, v8")
k("s_cmp_lt_u32 s2, 145")
k(f"s_cselect_b32 s47, 0, {W_LDS_A}")
k("s_mul_i32 s36, s46, 6656")
k("s_add_u32 s47, s47, s36")
k("s_sub_u32 s48, s2, 128")
k("s_lshr_b32 s36, s48, 3")
k("s_lshl_b32 s36, s36, 2")
k("s_and_b32 s37, s48, 7")
k("s_lshl_b32 s37, s37, 8")
k("s_add_u32 s36, s36, s37")
k("s_mul_i32 s36, s36, 578")
k("s_min_u32 s37, s46, 2")
k("s_mul_i32 s37, s37, 192")
k("s_add_u32 s49, s36, s37")
k("s_waitcnt lgkmcnt(0)")
for a, base in ((0, 40), (1, 52)):
    k(f"s_mov_b32 s{base}, s{24+2*a}")
    k(f"s_mov_b32 s{base+1}, s{25+2*a}")
    k(f"s_mov_b32 s{base+2}, {2048*289*2}")
    k(f"s_mov_b32 s{base+3}, 0x20000")
k("s_mov_b32 exec_hi, 0xfffff")
k("s_mov_b32 m0, s47")
for psi in range(4):
    for a, base in ((0, 40), (1, 52)):
        k(f"buffer_load_dwordx4 v9, s[{base}:{base+3}], s49 offen lds")
        if (psi, a) != (3, 1): k("s_add_u32 m0, m0, 832")
    if psi < 3: k(f"s_add_u32 s49, s49, {64*578}")
k("s_mov_b64 exec, -1")
k("s_cmp_eq_u32 s59, 0")
k("s_cbranch_scc1 L_wg")
with k.cond():
    tile_load()
    tile_in_code(8)
k("L_wg:")
k(f"s_mul_i32 s36, s48, {LINEB}")
k(f"s_add_u32 s36, s36, {WB}")
k("s_add_u32 s38, s32, s36")
k("s_addc_u32 s39, s33, 0")
k("s_waitcnt vmcnt(0)")
stamp(1)
def w_reads(rd):
    k(f"v_and_b32 v{72+rd}, 0xffff, v{64+rd}")
    k(f"v_add_u32 v{72+rd}, s47, v{72+rd}")
    for j in range(8): k(f"ds_read_u16 v{8+8*rd+j}, v{72+rd} offset:{832*j}")
def w_out(rd):
    k(f"v_lshrrev_b32 v{64+rd}, 16, v{64+rd}")
    for j in range(4): k(f"v_lshl_or_b32 v{80+4*rd+j}, v{8+8*rd+2*j+1}, 16, v{8+8*rd+2*j}")
    emit(tag_ins(80+4*rd))
    k(f"global_store_dwordx4 v{64+rd}, {v(80+4*rd,4)}, s[38:39] sc1")
w_reads(0)
k("s_cmp_eq_u32 s46, 3")
k("s_cbranch_scc1 L_wlast")
for rd in range(1, 6):
    w_reads(rd)
    if rd > 1: w_out(rd-1)
w_out(5)
k("L_wlast:")
k("s_waitcnt lgkmcnt(0)")
w_out(0)
stamp(2)
k("s_cmp_lt_u32 s2, 145")
k("s_cbranch_scc1 L_auxB")
k("s_cmp_eq_u32 s59, 1")
k("s_cbranch_scc1 L_tile_out")
end_wave()
k("L_aux_lo:")
k("s_waitcnt lgkmcnt(0)")
k("s_cmp_lt_u32 s2, 145")
k("s_cbranch_scc1 L_auxB")
k("s_cmp_eq_u32 s59, 0")
k("s_cbranch_scc1 L_aux_ch")
tile_load()
tile_in_code(8)
k("s_branch L_tile_out")
k("L_auxB:")
k("s_waitcnt vmcnt(0)")
k("s_barrier")
k("s_branch L_P2")
k("L_aux_ch:")
k("s_cmp_ge_u32 s2, 241")
k("s_cbranch_scc1 L_end")
k(f"s_add_u32 s62, s2, {512-177}")
k("s_branch L_Ach")

k("L_A2:")
k("s_sub_u32 s56, s2, 256")
k("s_mov_b32 s59, 1")
k("s_lshl_b32 s62, s56, 1")
k("s_lshr_b32 s36, s3, 2")
k("s_add_u32 s62, s62, s36")
tile_setup()
k("s_waitcnt lgkmcnt(0)")
k("L_Ach:")
k("s_and_b32 s36, s62, -2")
k("s_lshl_b32 s36, s36, 1")
k("s_load_dword s63, s[18:19], s36")
k("v_and_b32 v8, 127, v0")
k("s_lshl_b32 s36, s62, 7")
k("v_add_lshl_u32 v8, v8, s36, 1")
for i in range(4): k(f"global_load_ushort v{10+i}, v8, s[{10+2*i}:{11+2*i}]")
k("s_cmp_eq_u32 s59, 0")
k("s_cbranch_scc1 L_A_nt0")
with k.cond(): tile_load()
k("L_A_nt0:")
k("s_and_b32 s46, s3, 3")
k("s_lshr_b32 s47, s3, 2")
k(f"s_mul_i32 s48, s47, {KT_SZ}")
k(f"s_mul_i32 s49, s47, {K_SZ}")
k(f"s_add_u32 s49, s49, {A_TAIL}")
k("s_and_b32 s36, s46, 1")
k("s_lshl_b32 s36, s36, 8")
k("s_add_u32 m0, s48, s36")
k("s_cmp_lt_u32 s46, 2")
k("s_cselect_b32 s50, 1.0, 2.0")
k("s_mov_b32 s51, 0x43800000")
k("s_cselect_b32 s51, 0x41800000, s51")
k("s_mov_b32 s52, 0x3fb8aa3b")
k("s_lshl_b32 s36, s62, 12")
k("s_lshl_b32 s37, s46, 10")
k("s_add_u32 s36, s36, s37")
k(f"s_add_u32 s36, s36, {UB}")
k("s_add_u32 s40, s32, s36")
k("s_addc_u32 s41, s33, 0")
k("s_waitcnt lgkmcnt(0)")
k("s_and_b32 s36, s62, 1")
k("s_lshl_b32 s36, s36, 4")
k("s_lshr_b32 s63, s63, s36")
k("s_lshl_b32 s63, s63, 16")
k("v_mov_b32 v9, s52")
k("v_mul_f32 v9, s63, v9")
k("v_exp_f32 v9, v9")
k("v_cvt_pk_bf16_f32 v9, v9, v9")
k("v_and_b32 v9, 0xffff0000, v9")
for i in range(4): k(f"v_lshlrev_b32 v{10+i}, 16, v{10+i}")
stamp(1)
k("v_mul_f32 v10, s52, v10")
k("v_exp_f32 v10, v10")
k("v_mul_f32 v11, v11, v9")
k("v_cvt_pk_bf16_f32 v10, v10, v10")
k("v_and_b32 v10, 0xffff0000, v10")
k("v_mul_f32 v10, v10, v9")
k("v_mul_f32 v11, 0.15915494, v11")
k("v_mul_f32 v10, s52, v10")
k("v_add_f32 v9, v9, v9")
k("v_mul_f32 v12, v12, v9")
k("v_mul_f32 v13, v13, v9")
for e, sp in ((14, 50), (16, 51)):
    k(f"v_mul_f32 v18, s{sp}, v10")
    k(f"v_mul_f32 v19, s{sp}, v11")
    k("v_exp_f32 v18, -v18")
    k("v_fract_f32 v19, v19")
    k(f"v_cos_f32 v{e}, v19")
    k(f"v_sin_f32 v{e+1}, v19")
    k(f"v_mul_f32 v{e}, v{e}, v18")
    k(f"v_mul_f32 v{e+1}, v{e+1}, v18")
k("s_cmp_eq_u32 s59, 0")
k("s_cbranch_scc1 L_A_nt1")
with k.cond(): tile_in_code(20)
k("L_A_nt1:")
stamp(2)
def cmul(d, a, e, t):
    return [f"v_pk_mul_f32 {v(t,2)}, {v(a,2)}, {v(e,2)} op_sel_hi:[0,1]",
            f"v_pk_fma_f32 {v(d,2)}, {v(a,2)}, {v(e,2)}, {v(t,2)} op_sel:[1,1,0] op_sel_hi:[1,0,1] neg_lo:[1,0,0]"]
cv = [0]
def put(src, row):
    c = 40 + (cv[0] & 3); cv[0] += 1
    return [f"v_cvt_pk_bf16_f32 v{c}, v{src}, v{src+1}", f"ds_write_addtid_b32 v{c} offset:{row*KT_PITCH}"]
def zipemit(*seqs):
    n = max(len(s) for s in seqs)
    for i in range(n):
        for s in seqs:
            if i < len(s): k(s[i])
ul = ["global_load_dwordx4 v[112:115], v3, s[40:41] sc1"]
k("s_cmp_ge_u32 s46, 2")
k("s_cbranch_scc1 L_kg1")
k("v_xor_b32 v17, 0x80000000, v17")
k("v_mov_b32 v44, 0x3f80")
k("ds_write_addtid_b32 v44")
k("v_mov_b32 v20, v16"); k("v_mov_b32 v21, v17")
for st in range(16):
    a = put(12, 16+st); b = put(20, 1+st) if st < 15 else []
    ca = cmul(12, 12, 14, 22) if st < 15 else []
    cb = cmul(20, 20, 16, 24) if st < 14 else []
    zipemit([a[0]] + ca[:1] + [a[1]] + ca[1:], b[:1] + cb[:1] + b[1:] + cb[1:])
    if st == 11: emit(ul)
k("s_branch L_kgdone")
k("L_kg1:")
H = [20 + 2*m for m in range(9)]
emit(cmul(H[0], 12, 16, 38))
for m in range(9):
    a = put(H[m], 32+m)
    ca = cmul(H[m+1], H[m], 14, 38) if m < 8 else []
    zipemit(ca, a)
for t in range(2):
    for m in range(5):
        emit(cmul(H[2*m], H[2*m], 16, 44 + 2*(m & 1)))
    for m in range(5): emit(put(H[2*m], 41+5*t+m))
for t in range(4):
    if t == 2: emit(ul)
    for m in range(3): emit(cmul(H[4*m], H[4*m], 16, 44 + 2*(m & 1)))
    for m in range(3): emit(put(H[4*m], 51+3*t+m))
k("L_kgdone:")
k("s_lshl_b32 s36, s46, 3")
k("s_lshr_b32 s37, 0x3e32281f, s36")
k("s_and_b32 s37, s37, 0xff")
k("s_lshr_b32 s53, 0x06050408, s36")
k("s_and_b32 s53, s53, 0xff")
k("s_cmp_eq_u32 s46, 0")
k("s_cselect_b32 s36, 3, 2")
k("v_bfe_u32 v8, v2, 2, 2")
k("v_mul_u32_u24 v8, s53, v8")
k("v_lshrrev_b32 v8, 1, v8")
k("v_and_b32 v9, 3, v2")
k("v_min_u32 v9, s36, v9")
k("v_add_u32 v8, v8, v9")
k("v_sub_u32 v8, s37, v8")
k("v_and_b32 v10, 48, v2")
k("v_add_u32 v10, s48, v10")
k(f"s_movk_i32 s36, {KT_PITCH}")
k("v_mad_u32_u24 v8, v8, s36, v10")
k("v_and_b32 v11, 15, v2")
k("v_mad_u32_u24 v9, v11, s36, v10")
k("s_waitcnt lgkmcnt(0)")
stamp(3)
k("s_barrier")
for ks in range(8):
    k(f"ds_read_b128 {v(16+8*ks,4)}, v8 offset:{64*ks}")
    k(f"ds_read_b128 {v(20+8*ks,4)}, v9 offset:{64*ks}")
poll("L_pu", ul, [112], 12, issued=True)
stamp(4)
k("s_cmp_eq_u32 s46, 3")
k("s_cselect_b32 s36, 0, -1")
k("v_and_b32 v12, s36, v114")
k("v_and_b32 v13, s36, v115")
k("s_add_u32 s36, s46, 1")
k("s_and_b32 s36, s36, 3")
k("s_lshl_b32 s37, s47, 2")
k("s_add_u32 s36, s36, s37")
k("s_lshl_b32 s36, s36, 3")
k(f"s_add_u32 s36, s36, {A_SLOT}")
k("v_mov_b32 v14, s36")
k("s_lshl_b32 s36, s3, 3")
k(f"s_add_u32 s36, s36, {A_SLOT}")
k("v_mov_b32 v15, s36")
k("s_mov_b32 exec_lo, 0"); k("s_brev_b32 exec_hi, 1")
k("ds_write_b64 v14, v[12:13]")
k("s_mov_b64 exec, -1")
for ks in range(8): mfma(80, 16+8*ks, 20+8*ks, 80 if ks else None)
k("s_waitcnt lgkmcnt(0)")
k("s_barrier")
k("ds_read_b64 v[98:99], v15")
k("s_lshl_b32 s36, s46, 10")
k("s_add_u32 s36, s36, s48")
k("v_add_u32 v12, s36, v3")
k(f"ds_write_b128 v12, v[112:115] offset:{3*U_PITCH+32}")
k("v_mov_b32 v101, v112"); k("v_mov_b32 v102, v113"); k("v_mov_b32 v103, v114")
k("v_alignbit_b32 v105, v113, v112, 16"); k("v_alignbit_b32 v106, v114, v113, 16"); k("v_alignbit_b32 v107, v115, v114, 16")
k("v_mov_b32 v110, v105"); k("v_mov_b32 v111, v106")
k("v_mov_b32 v13, 0")
k(f"s_mul_i32 s36, s46, {U_PITCH}")
k("s_add_u32 s36, s36, s48")
k("s_mul_i32 s37, s46, 120")
k("s_add_u32 s37, s37, s49")
k(f"s_add_u32 s37, s37, {4096-32}")
k("v_mov_b32 v14, s37"); k("v_mov_b32 v15, s36")
k("v_cmp_gt_u32 vcc, 8, v2")
k("v_cndmask_b32 v14, v14, v15, vcc")
k("v_lshl_add_u32 v14, v2, 2, v14")
k("s_mov_b32 exec_hi, 0x3f")
k("ds_write_b32 v14, v13")
k("s_mov_b64 exec, -1")
k("v_mov_b32_dpp v98, v114 wave_shr:1 row_mask:0xf bank_mask:0xf")
k("v_mov_b32_dpp v99, v115 wave_shr:1 row_mask:0xf bank_mask:0xf")
k("v_mov_b32 v100, v99")
k("v_alignbit_b32 v104, v112, v99, 16")
k("v_alignbit_b32 v108, v99, v98, 16")
k("v_mov_b32 v109, v104")
k(f"ds_write_b128 v12, v[100:103] offset:{U_PITCH+32}")
k(f"ds_write_b128 v12, v[104:107] offset:{2*U_PITCH+32}")
k("ds_write_b128 v12, v[108:111] offset:32")
k("v_lshlrev_b32 v13, 5, v11")
k("v_sub_u32 v13, s49, v13")
k("v_lshrrev_b32 v14, 4, v2")
k("s_cmp_eq_u32 s46, 2")
k("s_cbranch_scc1 L_ke2")
k("s_cmp_eq_u32 s46, 3")
k("s_cbranch_scc1 L_ke3")
with k.cond():
    k("v_lshl_add_u32 v14, v14, 3, v13")
    k("s_lshl_b32 s36, s46, 9")
    k("v_subrev_u32 v14, s36, v14")
    k("v_cvt_pk_bf16_f32 v84, v80, v81")
    k("v_cvt_pk_bf16_f32 v85, v82, v83")
    k("ds_write_b64 v14, v[84:85] offset:4064")
    k("s_branch L_kedone")
    k("L_ke2:")
    k("v_and_b32 v15, 16, v2")
    k("v_add_u32 v15, v15, v13")
    k("v_lshrrev_b32 v14, 5, v2")
    k("v_lshl_add_u32 v14, v14, 9, v15")
    k("v_cvt_pk_bf16_f32 v84, v80, v80"); k("v_cvt_pk_bf16_f32 v85, v81, v81")
    k("v_cvt_pk_bf16_f32 v86, v81, v82"); k("v_cvt_pk_bf16_f32 v87, v82, v82")
    k("ds_write_b128 v14, v[84:87] offset:2528")
    k("s_branch L_kedone")
    k("L_ke3:")
    k("v_lshl_add_u32 v14, v14, 9, v13")
    k("v_cvt_pk_bf16_f32 v84, v80, v80"); k("v_cvt_pk_bf16_f32 v86, v81, v81")
    k("v_cvt_pk_bf16_f32 v89, v81, v82"); k("v_cvt_pk_bf16_f32 v90, v82, v82")
    k("v_mov_b32 v85, v84"); k("v_mov_b32 v87, v86"); k("v_mov_b32 v88, v86"); k("v_mov_b32 v91, v90")
    k("ds_write_b128 v14, v[84:87] offset:480")
    k("ds_write_b128 v14, v[88:91] offset:496")
k("L_kedone:")
k("s_lshl_b32 s36, s46, 7")
k("v_and_b32 v10, 48, v2")
k("v_add3_u32 v9, v13, v10, s36")
k("v_and_b32 v8, 3, v2")
k(f"v_mul_u32_u24 v8, {U_PITCH}, v8")
k("v_and_b32 v14, 12, v2")
k("v_lshl_add_u32 v8, v14, 1, v8")
k("s_add_u32 s36, s36, s48")
k("v_add3_u32 v8, v8, v10, s36")
k("s_waitcnt lgkmcnt(0)")
stamp(5)
k("s_barrier")
ACC, FA, FB = 16, 48, 80
def rdA(q, rr):
    k(f"ds_read_b64 {v(FA+4*q,2)}, v8 offset:{8+512*q+64*rr}")
    k(f"ds_read_b64 {v(FA+4*q+2,2)}, v8 offset:{16+512*q+64*rr}")
def rdB(j, rr): k(f"ds_read_b128 {v(FB+4*j,4)}, v9 offset:{480+512*(7-j)+64*rr}")
for q in range(7, -1, -1):
    rdA(q, 0); rdB(7-q, 0)
for rr in range(2):
    for q in range(7, -1, -1):
        for j in range(8-q):
            t = q + j
            mfma(ACC+4*t, FA+4*q, FB+4*j, None if (rr == 0 and j == 0) else ACC+4*t)
            if rr == 0 and q == 0: rdB(j, 1)
        if rr == 0: rdA(q, 1)
stamp(6)
k("s_lshl_b32 s36, s46, 12")
k("s_add_u32 s36, s36, s48")
k("v_add_u32 v8, s36, v3")
k("s_lshl_b32 s36, s46, 10")
k("s_add_u32 s36, s36, s48")
k("v_add_u32 v9, s36, v3")
k("s_movk_i32 s36, 0x3f80")
k("s_mov_b32 s37, 1.0")
for d in range(4):
    for i in range(4): k(f"v_cvt_pk_bf16_f32 v{FA+4*d+i}, v{ACC+8*d+2*i}, v{ACC+8*d+2*i+1}")
    k(f"ds_write_b128 v8, {v(FA+4*d,4)} offset:{A_PART+1024*d}")
k("s_waitcnt lgkmcnt(0)")
k("s_barrier")
for s_ in range(4): k(f"ds_read_b128 {v(FB+4*s_,4)}, v9 offset:{A_PART+4096*s_}")
for i in range(4):
    k(f"v_lshlrev_b32 v{ACC+2*i}, 16, v{FB+i}")
    k(f"v_and_b32 v{ACC+2*i+1}, 0xffff0000, v{FB+i}")
for s_ in range(1, 4):
    for i in range(4):
        k(f"v_dot2_f32_bf16 v{ACC+2*i}, v{FB+4*s_+i}, s36, v{ACC+2*i}")
        k(f"v_dot2_f32_bf16 v{ACC+2*i+1}, v{FB+4*s_+i}, s37, v{ACC+2*i+1}")
for i in range(4): k(f"v_cvt_pk_bf16_f32 v{FA+i}, v{ACC+2*i}, v{ACC+2*i+1}")
emit(tag_ins(FA, inv=True))
k(f"global_store_dwordx4 v3, {v(FA,4)}, s[40:41] sc1")
stamp(7)
k("s_cmp_eq_u32 s59, 0")
k("s_cbranch_scc1 L_end")

k("L_tile_out:")
k("s_lshr_b32 s36, s57, 3")
k("s_lshl_b32 s36, s36, 9")
k("s_bfe_u32 s37, s57, 0x20001")
k("s_lshl_b32 s37, s37, 2")
k("s_add_u32 s36, s36, s37")
k("s_and_b32 s37, s57, 1")
k("s_lshl_b32 s37, s37, 7")
k("s_add_u32 s36, s36, s37")
k("s_lshl_b32 s37, s3, 4")
k("s_add_u32 s36, s36, s37")
k("v_bfe_u32 v8, v0, 3, 2")
k("v_bfe_u32 v9, v0, 5, 1")
k("v_lshl_add_u32 v8, v9, 8, v8")
k("v_add_u32 v8, s36, v8")
k("v_and_b32 v9, 7, v0")
k("v_lshlrev_b32 v9, 4, v9")
k("s_lshl_b32 s37, s58, 7")
k("v_add_u32 v9, s37, v9")
k("s_movk_i32 s36, 1152")
k("v_mad_u32_u24 v10, v8, s36, v9")
k("global_load_dwordx4 v[12:15], v10, s[8:9]")
k("global_load_dwordx4 v[16:19], v9, s[20:21]")
k("s_movk_i32 s36, 2304")
k("v_mad_u32_u24 v10, v8, s36, v9")
k(f"v_subrev_u32 v120, {A_TAIL}, v120")
k(f"v_subrev_u32 v121, {A_TAIL}, v121")
k("s_waitcnt vmcnt(0)")
stamp(8)
yl = ["global_load_dwordx4 v[124:127], v122, s[60:61] sc1"]
emit(yl)
for i in range(4):
    k(f"v_lshlrev_b32 v{20+2*i}, 16, v{12+i}"); k(f"v_and_b32 v{21+2*i}, 0xffff0000, v{12+i}")
    k(f"v_lshlrev_b32 v28, 16, v{16+i}"); k(f"v_and_b32 v29, 0xffff0000, v{16+i}")
    k(f"v_pk_mul_f32 {v(20+2*i,2)}, {v(20+2*i,2)}, v[28:29]")
    k(f"v_cvt_pk_bf16_f32 v{12+i}, v{20+2*i}, v{21+2*i}")
    k(f"v_lshlrev_b32 v{20+2*i}, 16, v{12+i}"); k(f"v_and_b32 v{21+2*i}, 0xffff0000, v{12+i}")
poll("L_py", yl, [124], 28, inv=True, issued=True, sleep=4)
stamp(9)
k("ds_write_b128 v120, v[124:127]")
k("s_waitcnt lgkmcnt(0)")
k("s_barrier")
for j in range(8): k(f"ds_read_u16_d16_hi v{32+j}, v121 offset:{128*j}")
for i in range(4):
    k(f"v_pk_add_f32 {v(32+2*i,2)}, {v(32+2*i,2)}, {v(20+2*i,2)}")
    k(f"v_cvt_pk_bf16_f32 v{12+i}, v{32+2*i}, v{33+2*i}")
k("global_store_dwordx4 v10, v[12:15], s[28:29]")
end_wave()

if PROF:
    k("L_prof:")
    k("s_waitcnt vmcnt(0)")
    stamp(15)
    k("s_mov_b64 exec, 1")
    k("s_lshl_b32 s36, s2, 3")
    k("s_add_u32 s36, s36, s3")
    k("s_lshl_b32 s36, s36, 6")
    k(f"s_add_u32 s36, s36, {STAMP_BASE}")
    k("v_mov_b32 v1, s36")
    k("s_waitcnt lgkmcnt(0)")
    k("s_mov_b32 s92, s96")
    for i in range(16): k(f"v_mov_b32 v{8+i}, s{64+2*i}")
    for i in range(4): k(f"global_store_dwordx4 v1, {v(8+4*i,4)}, s[32:33] offset:{16*i}")
k("L_exit:")
k("s_endpgm")

body = k.text()
mv, ms = k.maxregs()
assert mv < 128, mv
tb = build_tables()
hdr = open("cdna_kernels/" + NAME + ".s.ref").read().split("; Override launch")[0] if "--nohdr" not in sys.argv else ""
s = hdr + "; @launch grid=(512,1,1) block=(512,1,1) lds=81920\n"
s += f'.amdgcn_target "amdgcn-amd-amdhsa--gfx950"\n.text\n.globl {NAME}_kernel\n.p2align 8\n.type {NAME}_kernel,@function\n{NAME}_kernel:\n'
s += body
s += ".p2align 8\n.type L_tables,@object\nL_tables:\n"
q = tb.view(np.uint64)
for i in range(0, len(q), 8):
    s += ".quad " + ",".join(hex(int(x)) for x in q[i:i+8]) + "\n"
s += f".size L_tables, {len(tb)*4}\n"
s += f""".section .rodata,"a"
.p2align 6
.amdhsa_kernel {NAME}_kernel
  .amdhsa_next_free_vgpr 128
  .amdhsa_next_free_sgpr 100
  .amdhsa_accum_offset 128
  .amdhsa_group_segment_fixed_size 0
  .amdhsa_kernarg_size 104
  .amdhsa_user_sgpr_count 2
  .amdhsa_user_sgpr_kernarg_segment_ptr 1
  .amdhsa_system_sgpr_workgroup_id_x 1
.end_amdhsa_kernel
"""
open(OUT, "w").write(s)
print("instrs", len(k.ins), "maxv", mv, "maxs", ms, "bytes", len(s))
```

```python
import sys, numpy as np
from asmlib import Asm
from design import *

NAME = "concat_heads__ssm_conv_s4d__spectral_gfnet__prompt"
PROF = "--prof" in sys.argv
OUT = [a for a in sys.argv[1:] if not a.startswith("--")]
OUT = OUT[0] if OUT else "k.s"
STAMP_BASE = 0x8000000
DBGWG = None
for a_ in sys.argv:
    if a_.startswith("--dbgwg="): DBGWG = int(a_.split("=")[1])

def build_tables():
    sa = stage_addr()
    p1 = p1_tables(); p3 = p3_tables(); p2 = p2_tables()
    def enc(t, name):
        if name == "ADDR": return sa
        if name.startswith("TW"): return f32_dw(t[name])
        if name.endswith("_x_16"):
            return np.concatenate([frag_dw(t[name.replace("_x_", "_0_")]), frag_dw(t[name.replace("_x_", "_1_")])], 1)
        return frag_dw(t[name])
    P1 = np.concatenate([enc(p1, n).reshape(-1) for n in P1_ORDER])
    P3 = np.concatenate([enc(p3, n).reshape(-1) for n in P3_ORDER])
    f1 = [frag_dw(p2[f"F1re_{w}_{k}"]).reshape(-1) for w in range(4) for k in range(4)]
    f2 = [frag_dw(p2[f"F2re_{t}_{k}"]).reshape(-1) for t in range(2) for k in range(2)]
    tw = np.zeros((2, 32, 68), np.uint32)
    tw[0, :, :64] = f32_dw(p2["TWc"]); tw[1, :, :64] = f32_dw(p2["TWs"])
    P2 = np.concatenate(f1 + f2 + [tw.reshape(-1)])
    P2 = np.concatenate([P2, np.zeros(10240 - len(P2), np.uint32)])
    wt = w_tables().copy()
    lane7 = ((np.arange(64) & 7) * 16).astype(np.uint32)[None, :, None]
    wt = (wt & 0xffff) | ((((wt >> 16) * 128) + lane7) << 16)
    WT = wt.reshape(4, 64, 2, 4).transpose(0, 2, 1, 3).reshape(-1)
    assert len(P1) == 4096 and len(P3) == 4096 and len(P2) == 10240 and len(WT) == 2048
    return np.concatenate([P1, P2, P3, WT]).astype(np.uint32)
T_P1, T_P2, T_P3, T_W = 0, 16384, 16384 + 40960, 16384 + 40960 + 16384

R0, R1, R2 = 0, 20480, 38912
L_F1, L_F2, L_TW = R2, R2 + 16384, R2 + 20480
KT_PITCH = 544
KT_SZ = 63 * KT_PITCH
A_TAIL = 2 * KT_SZ
K_SZ = 4576
A_SLOT = A_TAIL + 2 * K_SZ
U_PITCH = 4160
A_PART = 4 * U_PITCH
W_LDS_A = 34304
LINEB = NQ * 128

k = Asm()
nst = [0]
def stamp(i):
    if PROF: k(f"s_memrealtime s[{64+2*i}:{65+2*i}]")
def v(a, n=1): return f"v{a}" if n == 1 else f"v[{a}:{a+n-1}]"
def mfma(d, a, b, c=None, k16=False):
    cs = "0" if c is None else v(c, 4)
    if k16: k(f"v_mfma_f32_16x16x16_bf16 {v(d,4)}, {v(a,2)}, {v(b,2)}, {cs}")
    else: k(f"v_mfma_f32_16x16x32_bf16 {v(d,4)}, {v(a,4)}, {v(b,4)}, {cs}")
def tag_ins(d, inv=False):
    a, b, c, e = (d+2, d+3, d, d+1) if inv else (d, d+1, d+2, d+3)
    return [f"v_and_or_b32 v{a}, v{a}, s97, 1", f"v_or_b32 v{b}, s99, v{b}", f"v_and_or_b32 v{c}, v{c}, -2, s98", f"v_and_b32 v{e}, s97, v{e}"]
def emit(lst):
    for x in lst: k(x)
def check_ins(d, acc, inv=False):
    a, b, c, e = (d+2, d+3, d, d+1) if inv else (d, d+1, d+2, d+3)
    return [f"v_bitop3_b32 v{acc}, v{a}, v{c}, 1 bitop3:0xdb", f"v_bitop3_b32 v{acc}, v{acc}, v{b}, v{e} bitop3:0xfb"]
def poll(name, loads, grans, tmp, inv=False, issued=False, sleep=1, restore="-1"):
    if not issued: emit(loads)
    k(f"{name}_chk:")
    k("s_waitcnt vmcnt(0)")
    for i, g in enumerate(grans):
        emit(check_ins(g, tmp if i == 0 else tmp+1, inv))
        if i: k(f"v_or_b32 v{tmp}, v{tmp}, v{tmp+1}")
    k(f"v_and_b32 v{tmp}, s99, v{tmp}")
    k(f"v_cmp_ne_u32 vcc, 0, v{tmp}")
    k(f"s_cbranch_vccz {name}_ok")
    k("s_cmp_eq_u32 s96, 0")
    k(f"s_cbranch_scc1 {name}_ok")
    k("s_sub_u32 s96, s96, 1")
    k("s_wqm_b64 exec, vcc")
    if sleep: k(f"s_sleep {sleep}")
    emit(loads)
    k(f"s_branch {name}_chk")
    k(f"{name}_ok:")
    k(f"s_mov_b64 exec, {restore}")
def tw_ins(re, im, c, s, out, t, conjW=False):
    L = []
    for pp in range(2):
        e = [2*pp, 2*pp+1]
        L += [f"v_mul_f32 v{t+j}, v{re+x}, v{c+x}" for j, x in enumerate(e)]
        if conjW:
            L += [f"v_fma_f32 v{t+j}, -v{im+x}, v{s+x}, v{t+j}" for j, x in enumerate(e)]
            L += [f"v_mul_f32 v{im+x}, v{im+x}, v{c+x}" for x in e]
            L += [f"v_fmac_f32 v{im+x}, v{re+x}, v{s+x}" for x in e]
        else:
            L += [f"v_fmac_f32 v{t+j}, v{im+x}, v{s+x}" for j, x in enumerate(e)]
            L += [f"v_mul_f32 v{im+x}, v{im+x}, v{c+x}" for x in e]
            L += [f"v_fma_f32 v{im+x}, -v{re+x}, v{s+x}, v{im+x}" for x in e]
        ng = "-" if conjW else ""
        L += [f"v_cvt_pk_bf16_f32 v{out+x}, v{t+j}, {ng}v{im+x}" for j, x in enumerate(e)]
    return L
def interleave(major, minor):
    n = len(major); j = 0
    for i, m in enumerate(major):
        m() if callable(m) else k(m)
        tgt = (i + 1) * len(minor) // n
        while j < tgt:
            k(minor[j]); j += 1
def tbl_addr(off_expr_sreg, const):
    k(f"s_add_u32 s38, s34, {off_expr_sreg}")
    k("s_addc_u32 s39, s35, 0")
    if const:
        k(f"s_add_u32 s38, s38, {const}")
        k("s_addc_u32 s39, s39, 0")
    k("v_mov_b32 v5, s39")
    k("v_add_co_u32 v4, vcc, s38, v3")
    k("v_addc_co_u32 v5, vcc, 0, v5, vcc")
def dma_p2():
    k("s_mul_i32 s36, s3, 5120")
    tbl_addr("s36", T_P2)
    k(f"s_add_u32 m0, s36, {R2}")
    for i in range(4): k(f"global_load_lds_dwordx4 v[4:5], off offset:{1024*i}")
    k("v_add_co_u32 v4, vcc, 0x1000, v4")
    k("v_addc_co_u32 v5, vcc, 0, v5, vcc")
    k(f"s_add_u32 m0, s36, {R2+4096}")
    k("global_load_lds_dwordx4 v[4:5], off")
def dma_16k(toff, lds):
    k("s_lshl_b32 s36, s3, 11")
    tbl_addr("s36", toff)
    k(f"s_add_u32 m0, s36, {lds}")
    for i in range(2): k(f"global_load_lds_dwordx4 v[4:5], off offset:{1024*i}")
def row_sa():
    k("s_lshr_b32 s37, s2, 3")
    k("s_lshl_b32 s37, s37, 7")
    k("s_and_b32 s36, s2, 7")
    k("s_lshl_b32 s36, s36, 2")
    k("s_add_u32 s37, s37, s36")
    k("s_and_b32 s36, s3, 1")
    k("s_lshl_b32 s36, s36, 6")
    k("s_add_u32 s37, s37, s36")
    k("s_lshr_b32 s36, s3, 1")
    k("s_add_u32 s37, s37, s36")
def stage_addrs():
    k("s_lshl_b32 s36, s3, 3")
    for mu in range(3):
        k(f"v_xor_b32 v{58+2*mu}, s36, v{64+mu}")
        k(f"v_xor_b32 v{59+2*mu}, 64, v{58+2*mu}")
def lin_addrs():
    k("v_lshrrev_b32 v1, 4, v0")
    k("v_xor_b32 v1, v1, v0")
    k("v_and_b32 v1, 7, v1")
    k("v_and_b32 v4, 0x1f8, v0")
    k("v_or_b32 v1, v1, v4")
    k("v_lshlrev_b32 v1, 4, v1")
    k("v_lshlrev_b32 v4, 4, v0")
    k("v_add_u32 v5, 0x2000, v4")
    k("v_add_u32 v6, 0x4000, v4")
    k(f"s_mul_i32 s36, s2, {LINEB}")
    k("s_add_u32 s38, s32, s36")
    k("s_addc_u32 s39, s33, 0")
def end_wave():
    if PROF: k("s_branch L_prof")
    else: k("s_endpgm")

k("s_cmp_ge_u32 s2, 512")
k("s_cbranch_scc1 L_exit")
if PROF:
    for i in range(16): k(f"s_mov_b32 s{64+2*i}, 0")
stamp(0)
k("s_load_dwordx16 s[8:23], s[0:1], 0")
k("s_load_dwordx8 s[24:31], s[0:1], 64")
k("s_load_dwordx2 s[32:33], s[0:1], 96")
k("s_getpc_b64 s[34:35]")
k("L_pc:")
k("s_add_u32 s34, s34, L_tables-L_pc")
k("s_addc_u32 s35, s35, 0")
k("v_lshrrev_b32 v1, 6, v0")
k("v_and_b32 v2, 63, v0")
k("v_readfirstlane_b32 s3, v1")
k("v_lshlrev_b32 v3, 4, v2")
k("s_mov_b32 s96, 0x4000")
k("s_mov_b32 s97, 0xfffefffe")
k("s_mov_b32 s98, 0x10000")
k("s_mov_b32 s99, 0x10001")
k("s_cmp_ge_u32 s2, 256")
k("s_cbranch_scc1 L_A2")
k("s_cmp_ge_u32 s2, 128")
k("s_cbranch_scc1 L_AUX")

k("s_setprio 2")
dma_16k(T_P1, R0)
row_sa()
k("v_cmp_lt_u32 vcc, 7, v2")
k("v_mov_b32 v7, 35712")
k("v_cndmask_b32 v6, 0, v7, vcc")
k("v_add_u32 v6, v6, v3")
k("v_add_u32 v7, v7, v3")
k("s_mul_i32 s36, s37, 1152")
k("s_mul_i32 s40, s3, 2304")
k(f"s_add_u32 s40, s40, {R1}")
k("s_mov_b32 m0, s40")
k("s_waitcnt lgkmcnt(0)")
k("s_add_u32 s38, s22, s36")
k("s_addc_u32 s39, s23, 0")
k("global_load_lds_dwordx4 v3, s[38:39]")
k("global_load_lds_dwordx4 v6, s[38:39] offset:1024")
k("s_mov_b64 exec, 0xffff")
k("global_load_lds_dwordx4 v7, s[38:39] offset:2048")
k("s_mov_b64 exec, -1")
k("v_lshrrev_b32 v8, 4, v2")
k("v_cmp_ne_u32 vcc, 3, v8")
k("v_bfe_u32 v9, v2, 2, 2")
k("v_cndmask_b32 v8, 0, v8, vcc")
k("v_lshl_add_u32 v8, v8, 3, v9")
k("v_mul_u32_u24 v8, 48, v8")
k("v_add_u32 v8, s40, v8")
k("v_and_b32 v9, 3, v2")
k("v_lshl_add_u32 v6, v9, 3, v8")
k("v_and_b32 v9, 1, v2")
k("v_lshl_add_u32 v7, v9, 3, v8")
k("v_bfe_u32 v9, v2, 1, 1")
k("v_mul_u32_u24 v9, 1152, v9")
k("v_add_u32 v7, v7, v9")
k("s_waitcnt vmcnt(3)")
k("s_barrier")
for i in range(16): k(f"ds_read_b128 {v(64+4*i,4)}, v3 offset:{R0+1024*i}")
dma_p2()
stage_addrs()
k("s_waitcnt lgkmcnt(0)")
k("s_barrier")
k("s_waitcnt vmcnt(5)")
stamp(1)
k("ds_read_b64_tr_b16 v[8:9], v6")
k("ds_read_b64_tr_b16 v[10:11], v6 offset:192")
k("ds_read_b64_tr_b16 v[12:13], v6 offset:1152")
k("ds_read_b64_tr_b16 v[14:15], v6 offset:1344")
k("ds_read_b64_tr_b16 v[16:17], v7 offset:32")
k("ds_read_b64_tr_b16 v[18:19], v7 offset:224")
for t in range(3):
    mfma(20+8*t, 8+4*t, 68); mfma(24+8*t, 8+4*t, 72)
A2 = lambda mu, vv: 92 + 12*mu + 4*vv
emit(tw_ins(20, 24, 76, 80, 44, 56))
interleave([lambda mu=mu: mfma(8+4*mu, A2(mu, 0), 44) for mu in range(3)], tw_ins(28, 32, 76, 80, 48, 56))
interleave([lambda mu=mu: mfma(20+4*mu, A2(mu, 0), 48) for mu in range(3)], tw_ins(36, 40, 84, 88, 52, 56))
for mu in range(3):
    mfma(8+4*mu, A2(mu, 1), 52, 8+4*mu); mfma(20+4*mu, A2(mu, 2), 52, 20+4*mu)
lin_addrs()
for mu in range(3):
    for col in range(2):
        o = 32 + 4*mu + 2*col
        k(f"v_cvt_pk_bf16_f32 v{o}, v{8+4*mu+2*col}, v{9+4*mu+2*col}")
        k(f"v_cvt_pk_bf16_f32 v{o+1}, v{20+4*mu+2*col}, v{21+4*mu+2*col}")
        k(f"ds_write_b64 v{58+2*mu+col}, {v(o,2)}")
k("s_waitcnt vmcnt(0) lgkmcnt(0)")
k("s_barrier")
for i in range(3): k(f"ds_read_b128 {v(8+4*i,4)}, v1 offset:{8192*i}")
for i in range(2):
    emit(tag_ins(8+4*i)); k(f"global_store_dwordx4 v{4+i}, {v(8+4*i,4)}, s[38:39] sc1")
k("v_cmp_gt_u32 vcc, 136, v0")
emit(tag_ins(16))
k("s_and_saveexec_b64 s[40:41], vcc")
k("s_cbranch_execz L_x1done")
with k.cond(): k("global_store_dwordx4 v6, v[16:19], s[38:39] sc1")
k("L_x1done:")
k("s_mov_b64 exec, -1")
stamp(2)

k("L_P2:")
k("s_and_b32 s46, s3, 3")
k("s_lshr_b32 s47, s3, 2")
k("s_lshl_b32 s36, s46, 12")
k("v_add_u32 v4, s36, v3")
for i in range(4): k(f"ds_read_b128 {v(64+4*i,4)}, v4 offset:{L_F1+1024*i}")
for i in range(4): k(f"ds_read_b128 {v(96+4*i,4)}, v3 offset:{L_F2+1024*i}")
k("v_lshrrev_b32 v5, 4, v2")
k("v_and_b32 v6, 15, v2")
k("v_mul_u32_u24 v7, 1088, v5")
k("v_lshl_add_u32 v7, v6, 2, v7")
k("s_lshl_b32 s36, s46, 6")
k(f"s_add_u32 s48, s36, {L_TW}")
k("v_add_u32 v7, s48, v7")
for cs in range(2):
    for mu in range(2):
        d = 32 + 8*cs + 4*mu
        if cs or mu: k(f"v_add_u32 v7, 4352, v7")
        k(f"ds_read2_b32 {v(d,2)}, v7 offset1:68")
        k(f"ds_read2_b32 {v(d+2,2)}, v7 offset0:136 offset1:204")
k("v_lshrrev_b32 v8, 2, v6")
k("v_lshl_add_u32 v9, v5, 3, v8")
k("v_lshl_add_u32 v10, v8, 3, v5")
k("v_and_b32 v8, 3, v2")
k("v_lshlrev_b32 v8, 4, v8")
k(f"s_movk_i32 s36, {LINEB}")
k("v_mad_u32_u24 v1, v9, s36, v8")
k("v_mad_u32_u24 v11, v10, s36, v8")
k(f"s_mul_i32 s36, s46, {32*LINEB}")
k("s_lshl_b32 s37, s2, 7")
k("s_add_u32 s36, s36, s37")
k("s_lshl_b32 s37, s47, 6")
k("s_add_u32 s36, s36, s37")
k("s_add_u32 s40, s32, s36")
k("s_addc_u32 s41, s33, 0")
k(f"s_add_u32 s42, s40, {4*LINEB}")
k("s_addc_u32 s43, s41, 0")
k(f"s_add_u32 s50, s40, {WB}")
k("s_addc_u32 s51, s41, 0")
k(f"s_add_u32 s52, s42, {WB}")
k("s_addc_u32 s53, s43, 0")
k("v_mul_u32_u24 v2, 272, v6")
k("v_lshl_add_u32 v2, v5, 4, v2")
k("v_add_u32 v2, s48, v2")
k("s_lshl_b32 s36, s47, 13")
k("v_add_u32 v3, s36, v3")
k("s_lshl_b32 s36, s46, 10")
k("v_add_u32 v4, s36, v3")
sc2 = np.float32(2.0/(S*D)).view(np.uint32); sc1 = np.float32(1.0/(S*D)).view(np.uint32)
k("s_lshl_b32 s36, s2, 1")
k("s_add_u32 s36, s36, s47")
k(f"s_mov_b32 s54, {hex(sc2)}")
k("s_cmp_eq_u32 s36, 0")
k(f"s_cselect_b32 s54, {hex(sc1)}, s54")
k(f"s_cmp_eq_u32 s36, {2*Q288}")
k(f"s_cselect_b32 s54, {hex(sc1)}, s54")
k(f"s_cmp_eq_u32 s36, {2*Q288+1}")
k("s_cselect_b32 s54, 0, s54")
k("s_mov_b32 s55, 0x8000")
xl = ["global_load_dwordx4 v[56:59], v1, s[40:41] sc1", "global_load_dwordx4 v[60:63], v1, s[42:43] sc1",
      "global_load_dwordx4 v[48:51], v11, s[50:51] sc1", "global_load_dwordx4 v[52:55], v11, s[52:53] sc1"]
k("s_waitcnt vmcnt(0)")
stamp(3)
emit(xl)
for i in range(16): k(f"v_pk_add_u16 v{80+i}, v{64+i}, s55 op_sel:[1,0] op_sel_hi:[0,1]")
for i in range(16): k(f"v_pk_add_u16 v{112+i}, v{96+i}, s55 op_sel:[1,0] op_sel_hi:[0,1]")
for i in range(16): k(f"v_mul_f32 v{32+i}, s54, v{32+i}")
k("v_mov_b32 v16, s98"); k("v_mov_b32 v17, 0"); k("v_mov_b32 v18, 1"); k("v_mov_b32 v19, s99")
poll("L_px", xl, [56, 60, 48, 52], 6, issued=True)
stamp(4)
k(f"ds_write_b128 v4, v[56:59] offset:{R1}")
k(f"ds_write_b128 v4, v[60:63] offset:{R1+4096}")
k("global_store_dwordx4 v11, v[16:19], s[50:51] sc1")
k("global_store_dwordx4 v11, v[16:19], s[52:53] sc1")
k("s_waitcnt lgkmcnt(0)")
stamp(8)
k("s_barrier")
stamp(9)
dreg = {(0,0): 56, (0,1): 60, (0,2): 24, (0,3): 28, (1,0): 8, (1,1): 12, (1,2): 56, (1,3): 60}
rd = lambda mu, kp: k(f"ds_read_b128 {v(dreg[mu,kp],4)}, v3 offset:{R1+1024*(4*mu+kp)}")
for key in [(0,0),(0,1),(0,2),(0,3),(1,0),(1,1)]: rd(*key)
for kp in range(4):
    mfma(16, dreg[0,kp], 64+4*kp, 16 if kp else None); mfma(20, dreg[0,kp], 80+4*kp, 20 if kp else None)
    if kp < 2: rd(1, 2+kp)
m1 = []
for kp in range(4):
    m1 += [lambda kp=kp: mfma(24, dreg[1,kp], 64+4*kp, 24 if kp else None), lambda kp=kp: mfma(28, dreg[1,kp], 80+4*kp, 28 if kp else None)]
m1[0](); m1[1]()
interleave(m1[2:], tw_ins(16, 20, 32, 40, 32, 6))
F2re = lambda t, ks: 96 + 8*t + 4*ks
F2im = lambda t, ks: 112 + 8*t + 4*ks
acc2 = {0: (16, 20), 1: (8, 12)}
unp = lambda src, wr, wi: [x for r in range(4) for x in (f"v_lshlrev_b32 v{wr+r}, 16, v{src+r}", f"v_and_b32 v{wi+r}, 0xffff0000, v{src+r}")]
s2k = lambda ks, T: [f for t in range(2) for f in (lambda t=t: mfma(acc2[t][0], F2re(t, ks), T, acc2[t][0] if ks else None), lambda t=t: mfma(acc2[t][1], F2im(t, ks), T, acc2[t][1] if ks else None))]
interleave(s2k(0, 32), unp(48, 56, 60))
emit(tw_ins(24, 28, 36, 44, 36, 6))
k("ds_read_b128 v[24:27], v2")
k("ds_read_b128 v[28:31], v2 offset:8704")
interleave(s2k(1, 36), unp(52, 40, 44))
k("ds_read_b128 v[48:51], v2 offset:4352")
k("ds_read_b128 v[52:55], v2 offset:13056")
emit(tw_ins(16, 20, 56, 60, 56, 6, conjW=True))
acc3 = {0: (32, 36), 1: (16, 20)}
s3k = lambda ks, Y: [f for t in range(2) for f in (lambda t=t: mfma(acc3[t][0], Y, F2re(t, ks), acc3[t][0] if ks else None), lambda t=t: mfma(acc3[t][1], Y, F2im(t, ks), acc3[t][1] if ks else None))]
interleave(s3k(0, 56), tw_ins(8, 12, 40, 44, 40, 6, conjW=True))
for f in s3k(1, 40): f()
emit(tw_ins(32, 36, 24, 28, 24, 6))
k(f"ds_write_b128 v4, v[24:27] offset:{R0}")
emit(tw_ins(16, 20, 48, 52, 48, 6))
k(f"ds_write_b128 v4, v[48:51] offset:{R0+4096}")
k("s_waitcnt lgkmcnt(0)")
stamp(10)
k("s_barrier")
stamp(11)
for i in range(8): k(f"ds_read_b128 {v(96+4*i,4)}, v3 offset:{R0+1024*i}")
for nu in range(2):
    for kp in range(4):
        mfma(8+8*nu, 64+4*kp, 96+16*nu+4*kp, 8+8*nu if kp else None); mfma(12+8*nu, 80+4*kp, 96+16*nu+4*kp, 12+8*nu if kp else None)
stamp(12)
for nu in range(2):
    for r in range(4): k(f"v_cvt_pk_bf16_f32 v{24+4*nu+r}, v{8+8*nu+r}, v{12+8*nu+r}")
    emit(tag_ins(24+4*nu, inv=True))
    k(f"global_store_dwordx4 v1, {v(24+4*nu,4)}, s[{40+2*nu}:{41+2*nu}] sc1")
stamp(5)
k("s_cmp_ge_u32 s2, 128")
k("s_cbranch_scc1 L_end")

k("v_and_b32 v2, 63, v0")
k("v_lshlrev_b32 v3, 4, v2")
dma_16k(T_P3, R1)
lin_addrs()
k("s_movk_i32 s36, 136")
k("v_cmp_gt_u32 vcc, s36, v0")
k("v_cndmask_b32 v6, v4, v6, vcc")
k("s_mov_b64 s[44:45], vcc")
row_sa()
k("s_waitcnt vmcnt(0)")
stamp(6)
zl = [f"global_load_dwordx4 {v(8+4*i,4)}, v{4+i}, s[38:39] sc1" for i in range(3)]
emit(zl)
k("s_barrier")
for i in range(16): k(f"ds_read_b128 {v(64+4*i,4)}, v3 offset:{R1+1024*i}")
k("v_mov_b32 v20, 0")
k("v_lshlrev_b32 v21, 2, v2")
k("v_and_b32 v21, 0x7f, v21")
k(f"ds_write_b32 v21, v20 offset:{R0+NQ*128}")
stage_addrs()
k("s_mul_i32 s40, s3, 2304")
k(f"s_add_u32 s40, s40, {R2}")
k("v_and_b32 v20, 15, v2")
k("v_mul_u32_u24 v20, 48, v20")
k("v_add_u32 v20, s40, v20")
k("v_lshrrev_b32 v21, 4, v2")
k("v_lshl_add_u32 v56, v21, 3, v20")
k("v_and_b32 v21, 1, v21")
k("v_lshl_add_u32 v57, v21, 3, v20")
k("v_lshrrev_b32 v21, 5, v2")
k("v_mul_u32_u24 v21, 1152, v21")
k("v_add_u32 v57, v57, v21")
poll("L_pz", zl, [8, 12, 16], 20, inv=True, issued=True)
stamp(7)
k("ds_write_b128 v1, v[8:11]")
k("ds_write_b128 v1, v[12:15] offset:8192")
k("s_mov_b64 exec, s[44:45]")
k("s_cbranch_execz L_zw")
with k.cond(): k("ds_write_b128 v1, v[16:19] offset:16384")
k("L_zw:")
k("s_mov_b64 exec, -1")
k("s_waitcnt lgkmcnt(0)")
k("s_barrier")
for i, d in enumerate([20, 24, 22, 26, 28, 30]): k(f"ds_read_b64 {v(d,2)}, v{58+i}")
k("v_cmp_lt_u32 vcc, 7, v2")
k(f"v_mov_b32 v5, {32*2304-1152}")
k("v_add_u32 v1, s40, v3")
k("v_cndmask_b32 v4, 0, v5, vcc")
k("v_add_u32 v4, v4, v3")
k("v_add_u32 v5, v5, v3")
k("s_mul_i32 s36, s37, 2304")
k("s_add_u32 s36, s36, 1152")
k("s_add_u32 s38, s28, s36")
k("s_addc_u32 s39, s29, 0")
k("v_swap_b32 v21, v24"); k("v_swap_b32 v23, v26"); k("v_swap_b32 v29, v30")
B3 = lambda vv, cp: 68 + 12*vv + 4*cp
B316 = lambda vv, cp: 76 + 12*vv + 2*cp
mfma(32, 20, B3(0,0)); mfma(36, 20, B3(0,1)); mfma(32, 28, B316(0,0), 32, True); mfma(36, 28, B316(0,1), 36, True)
mfma(40, 24, B3(0,0)); mfma(44, 24, B3(0,1)); mfma(40, 30, B316(0,0), 40, True); mfma(44, 30, B316(0,1), 44, True)
ms = [lambda: mfma(48, 20, B3(1,0)), lambda: mfma(52, 20, B3(1,1)), lambda: mfma(48, 28, B316(1,0), 48, True), lambda: mfma(52, 28, B316(1,1), 52, True),
      lambda: mfma(48, 24, B3(2,0), 48), lambda: mfma(52, 24, B3(2,1), 52), lambda: mfma(48, 30, B316(2,0), 48, True), lambda: mfma(52, 30, B316(2,1), 52, True)]
interleave(ms, tw_ins(32, 36, 104, 108, 8, 6) + tw_ins(40, 44, 104, 108, 12, 6))
interleave([lambda: mfma(20, 8, 120), lambda: mfma(24, 8, 124), lambda: mfma(32, 12, 120), lambda: mfma(36, 12, 124)], ["s_nop 0"]*4)
emit(tw_ins(48, 52, 112, 116, 16, 6))
mfma(40, 16, 120); mfma(44, 16, 124)
def outw(acc, areg, off):
    k(f"v_cvt_pk_bf16_f32 v{acc}, v{acc}, v{acc+1}")
    k(f"v_cvt_pk_bf16_f32 v{acc+1}, v{acc+2}, v{acc+3}")
    return f"ds_write_b64 v{areg}, {v(acc,2)} offset:{off}"
k(outw(20, 56, 0)); k(outw(32, 56, 1152))
w1 = [outw(24, 56, 768), outw(36, 56, 1920)]
k(outw(40, 57, 32))
w1.append(outw(44, 57, 800))
k("s_mov_b32 exec_lo, 0x00ff00ff"); k("s_mov_b32 exec_hi, 0x00ff00ff")
emit(w1)
k("s_mov_b64 exec, -1")
k("s_waitcnt lgkmcnt(0)")
for i in range(3): k(f"ds_read_b128 {v(8+4*i,4)}, v1 offset:{1024*i}")
k("global_store_dwordx4 v3, v[8:11], s[38:39]")
k("global_store_dwordx4 v4, v[12:15], s[38:39] offset:1024")
k("s_mov_b64 exec, 0xffff")
k("global_store_dwordx4 v5, v[16:19], s[38:39] offset:2048")
k("L_end:")
end_wave()

def tile_setup():
    k("s_and_b32 s57, s56, 31")
    k("s_lshr_b32 s58, s56, 5")
    k("s_lshl_b32 s36, s3, 4")
    k("v_lshlrev_b32 v120, 4, v0")
    k("v_xor_b32 v120, s36, v120")
    k("v_and_b32 v4, 7, v0")
    k("v_xor_b32 v5, s3, v4")
    k("v_lshlrev_b32 v5, 4, v5")
    k("v_lshl_or_b32 v5, v4, 10, v5")
    k("v_bfe_u32 v6, v0, 3, 3")
    k("v_lshl_or_b32 v121, v6, 1, v5")
    k("v_lshrrev_b32 v6, 3, v0")
    k("v_lshlrev_b32 v4, 4, v4")
    k("v_lshl_or_b32 v122, v6, 12, v4")
    k("s_movk_i32 s36, 1152")
    k("v_mad_u32_u24 v7, v6, s36, v4")
def tile_load():
    k(f"s_mul_i32 s36, s57, {64*1152}")
    k("s_lshl_b32 s37, s58, 7")
    k("s_add_u32 s36, s36, s37")
    k("s_add_u32 s38, s8, s36")
    k("s_addc_u32 s39, s9, 0")
    k("global_load_dwordx4 v[124:127], v7, s[38:39]")
    k("s_lshl_b32 s36, s58, 18")
    k("s_lshl_b32 s37, s57, 7")
    k("s_add_u32 s36, s36, s37")
    k(f"s_add_u32 s36, s36, {UB}")
    k("s_add_u32 s60, s32, s36")
    k("s_addc_u32 s61, s33, 0")
def tile_in_code(t0):
    k(f"v_add_u32 v120, {A_TAIL}, v120")
    k(f"v_add_u32 v121, {A_TAIL}, v121")
    k("ds_write_b128 v120, v[124:127]")
    k("s_waitcnt lgkmcnt(0)")
    k("s_barrier")
    for j in range(8): k(f"ds_read_u16 v{t0+j}, v121 offset:{128*j}")
    for j in range(4): k(f"v_lshl_or_b32 v{124+j}, v{t0+2*j+1}, 16, v{t0+2*j}")
    emit(tag_ins(124))
    k("global_store_dwordx4 v122, v[124:127], s[60:61] sc1")

k("L_AUX:")
k("s_cmp_ge_u32 s2, 145")
k("s_cbranch_scc1 L_aux1")
k("s_setprio 2")
with k.cond(): dma_p2()
k("L_aux1:")
k("s_sub_u32 s56, s2, 145")
k("s_cmp_lt_u32 s56, 32")
k("s_cselect_b32 s59, 1, 0")
k("s_add_u32 s56, s56, 256")
tile_setup()
k("s_cmp_lt_u32 s3, 4")
k("s_cbranch_scc1 L_aux_lo")
k("s_sub_u32 s46, s3, 4")
k("s_lshl_b32 s36, s46, 11")
tbl_addr("s36", T_W)
k("global_load_dwordx4 v[64:67], v[4:5], off")
k("global_load_dwordx4 v[68:71], v[4:5], off offset:1024")
k("v_mul_u32_u24 v8, 79, v2")
k("v_lshrrev_b32 v8, 10, v8")
k("v_mul_u32_u24 v9, 370, v8")
k("v_add_u32 v9, v9, v3")
k("v_and_b32 v8, 1, v8")
k("v_lshlrev_b32 v8, 1, v8")
k("v_sub_u32 v9, v9, v8")
k("s_cmp_lt_u32 s2, 145")
k(f"s_cselect_b32 s47, 0, {W_LDS_A}")
k("s_mul_i32 s36, s46, 6656")
k("s_add_u32 s47, s47, s36")
k("s_sub_u32 s48, s2, 128")
k("s_lshr_b32 s36, s48, 3")
k("s_lshl_b32 s36, s36, 2")
k("s_and_b32 s37, s48, 7")
k("s_lshl_b32 s37, s37, 8")
k("s_add_u32 s36, s36, s37")
k("s_mul_i32 s36, s36, 578")
k("s_min_u32 s37, s46, 2")
k("s_mul_i32 s37, s37, 192")
k("s_add_u32 s49, s36, s37")
k("s_waitcnt lgkmcnt(0)")
for a, base in ((0, 40), (1, 52)):
    k(f"s_mov_b32 s{base}, s{24+2*a}")
    k(f"s_mov_b32 s{base+1}, s{25+2*a}")
    k(f"s_mov_b32 s{base+2}, {2048*289*2}")
    k(f"s_mov_b32 s{base+3}, 0x20000")
k("s_mov_b32 exec_hi, 0xfffff")
k("s_mov_b32 m0, s47")
for psi in range(4):
    for a, base in ((0, 40), (1, 52)):
        k(f"buffer_load_dwordx4 v9, s[{base}:{base+3}], s49 offen lds")
        if (psi, a) != (3, 1): k("s_add_u32 m0, m0, 832")
    if psi < 3: k(f"s_add_u32 s49, s49, {64*578}")
k("s_mov_b64 exec, -1")
k("s_cmp_eq_u32 s59, 0")
k("s_cbranch_scc1 L_wg")
with k.cond():
    tile_load()
    tile_in_code(8)
k("L_wg:")
k(f"s_mul_i32 s36, s48, {LINEB}")
k(f"s_add_u32 s36, s36, {WB}")
k("s_add_u32 s38, s32, s36")
k("s_addc_u32 s39, s33, 0")
k("s_waitcnt vmcnt(0)")
stamp(1)
def w_reads(rd):
    k(f"v_and_b32 v{72+rd}, 0xffff, v{64+rd}")
    k(f"v_add_u32 v{72+rd}, s47, v{72+rd}")
    for j in range(8): k(f"ds_read_u16 v{8+8*rd+j}, v{72+rd} offset:{832*j}")
def w_out(rd):
    k(f"v_lshrrev_b32 v{64+rd}, 16, v{64+rd}")
    for j in range(4): k(f"v_lshl_or_b32 v{80+4*rd+j}, v{8+8*rd+2*j+1}, 16, v{8+8*rd+2*j}")
    emit(tag_ins(80+4*rd))
    k(f"global_store_dwordx4 v{64+rd}, {v(80+4*rd,4)}, s[38:39] sc1")
w_reads(0)
k("s_cmp_eq_u32 s46, 3")
k("s_cbranch_scc1 L_wlast")
for rd in range(1, 6):
    w_reads(rd)
    if rd > 1: w_out(rd-1)
w_out(5)
k("L_wlast:")
k("s_waitcnt lgkmcnt(0)")
w_out(0)
stamp(2)
k("s_cmp_lt_u32 s2, 145")
k("s_cbranch_scc1 L_auxB")
k("s_cmp_eq_u32 s59, 1")
k("s_cbranch_scc1 L_tile_out")
end_wave()
k("L_aux_lo:")
k("s_waitcnt lgkmcnt(0)")
k("s_cmp_lt_u32 s2, 145")
k("s_cbranch_scc1 L_auxB")
k("s_cmp_eq_u32 s59, 0")
k("s_cbranch_scc1 L_aux_ch")
tile_load()
tile_in_code(8)
k("s_branch L_tile_out")
k("L_auxB:")
k("s_waitcnt vmcnt(0)")
k("s_barrier")
k("s_branch L_P2")
k("L_aux_ch:")
k("s_cmp_ge_u32 s2, 241")
k("s_cbranch_scc1 L_end")
k(f"s_add_u32 s62, s2, {512-177}")
k("s_branch L_Ach")

k("L_A2:")
k("s_sub_u32 s56, s2, 256")
k("s_mov_b32 s59, 1")
k("s_lshl_b32 s62, s56, 1")
k("s_lshr_b32 s36, s3, 2")
k("s_add_u32 s62, s62, s36")
tile_setup()
k("s_waitcnt lgkmcnt(0)")
k("L_Ach:")
k("s_and_b32 s36, s62, -2")
k("s_lshl_b32 s36, s36, 1")
k("s_load_dword s63, s[18:19], s36")
k("v_and_b32 v8, 127, v0")
k("s_lshl_b32 s36, s62, 7")
k("v_add_lshl_u32 v8, v8, s36, 1")
for i in range(4): k(f"global_load_ushort v{10+i}, v8, s[{10+2*i}:{11+2*i}]")
k("s_cmp_eq_u32 s59, 0")
k("s_cbranch_scc1 L_A_nt0")
with k.cond(): tile_load()
k("L_A_nt0:")
k("s_and_b32 s46, s3, 3")
k("s_lshr_b32 s47, s3, 2")
k(f"s_mul_i32 s48, s47, {KT_SZ}")
k(f"s_mul_i32 s49, s47, {K_SZ}")
k(f"s_add_u32 s49, s49, {A_TAIL}")
k("s_and_b32 s36, s46, 1")
k("s_lshl_b32 s36, s36, 8")
k("s_add_u32 m0, s48, s36")
k("s_cmp_lt_u32 s46, 2")
k("s_cselect_b32 s50, 1.0, 2.0")
k("s_mov_b32 s51, 0x43800000")
k("s_cselect_b32 s51, 0x41800000, s51")
k("s_mov_b32 s52, 0x3fb8aa3b")
k("s_lshl_b32 s36, s62, 12")
k("s_lshl_b32 s37, s46, 10")
k("s_add_u32 s36, s36, s37")
k(f"s_add_u32 s36, s36, {UB}")
k("s_add_u32 s40, s32, s36")
k("s_addc_u32 s41, s33, 0")
k("s_waitcnt lgkmcnt(0)")
k("s_and_b32 s36, s62, 1")
k("s_lshl_b32 s36, s36, 4")
k("s_lshr_b32 s63, s63, s36")
k("s_lshl_b32 s63, s63, 16")
k("v_mov_b32 v9, s52")
k("v_mul_f32 v9, s63, v9")
k("v_exp_f32 v9, v9")
k("v_cvt_pk_bf16_f32 v9, v9, v9")
k("v_and_b32 v9, 0xffff0000, v9")
for i in range(4): k(f"v_lshlrev_b32 v{10+i}, 16, v{10+i}")
stamp(1)
k("v_mul_f32 v10, s52, v10")
k("v_exp_f32 v10, v10")
k("v_mul_f32 v11, v11, v9")
k("v_cvt_pk_bf16_f32 v10, v10, v10")
k("v_and_b32 v10, 0xffff0000, v10")
k("v_mul_f32 v10, v10, v9")
k("v_mul_f32 v11, 0.15915494, v11")
k("v_mul_f32 v10, s52, v10")
k("v_add_f32 v9, v9, v9")
k("v_mul_f32 v12, v12, v9")
k("v_mul_f32 v13, v13, v9")
for e, sp in ((14, 50), (16, 51)):
    k(f"v_mul_f32 v18, s{sp}, v10")
    k(f"v_mul_f32 v19, s{sp}, v11")
    k("v_exp_f32 v18, -v18")
    k("v_fract_f32 v19, v19")
    k(f"v_cos_f32 v{e}, v19")
    k(f"v_sin_f32 v{e+1}, v19")
    k(f"v_mul_f32 v{e}, v{e}, v18")
    k(f"v_mul_f32 v{e+1}, v{e+1}, v18")
k("s_cmp_eq_u32 s59, 0")
k("s_cbranch_scc1 L_A_nt1")
with k.cond(): tile_in_code(20)
k("L_A_nt1:")
stamp(2)
def cmul(d, a, e, t):
    return [f"v_mul_f32 v{t}, v{a}, v{e}\nv_mul_f32 v{t+1}, v{a}, v{e+1}",
            f"v_fma_f32 v{d}, -v{a+1}, v{e+1}, v{t}\nv_fma_f32 v{d+1}, v{a+1}, v{e}, v{t+1}"]
cv = [0]
def put(src, row):
    c = 40 + (cv[0] & 3); cv[0] += 1
    return [f"v_cvt_pk_bf16_f32 v{c}, v{src}, v{src+1}", f"ds_write_addtid_b32 v{c} offset:{row*KT_PITCH}"]
def zipemit(*seqs):
    n = max(len(s) for s in seqs)
    for i in range(n):
        for s in seqs:
            if i < len(s): k(s[i])
ul = ["global_load_dwordx4 v[112:115], v3, s[40:41] sc1"]
k("s_cmp_ge_u32 s46, 2")
k("s_cbranch_scc1 L_kg1")
k("v_xor_b32 v17, 0x80000000, v17")
k("v_mov_b32 v44, 0x3f80")
k("ds_write_addtid_b32 v44")
k("v_mov_b32 v20, v16"); k("v_mov_b32 v21, v17")
for st in range(16):
    a = put(12, 16+st); b = put(20, 1+st) if st < 15 else []
    ca = cmul(12, 12, 14, 22) if st < 15 else []
    cb = cmul(20, 20, 16, 24) if st < 14 else []
    zipemit([a[0]] + ca[:1] + [a[1]] + ca[1:], b[:1] + cb[:1] + b[1:] + cb[1:])
    if st == 11: emit(ul)
k("s_branch L_kgdone")
k("L_kg1:")
H = [20 + 2*m for m in range(9)]
emit(cmul(H[0], 12, 16, 38))
for m in range(9):
    a = put(H[m], 32+m)
    ca = cmul(H[m+1], H[m], 14, 38) if m < 8 else []
    zipemit(ca, a)
for t in range(2):
    for m in range(5):
        emit(cmul(H[2*m], H[2*m], 16, 44 + 2*(m & 1)))
    for m in range(5): emit(put(H[2*m], 41+5*t+m))
for t in range(4):
    if t == 2: emit(ul)
    for m in range(3): emit(cmul(H[4*m], H[4*m], 16, 44 + 2*(m & 1)))
    for m in range(3): emit(put(H[4*m], 51+3*t+m))
k("L_kgdone:")
k("s_lshl_b32 s36, s46, 3")
k("s_lshr_b32 s37, 0x3e32281f, s36")
k("s_and_b32 s37, s37, 0xff")
k("s_lshr_b32 s53, 0x06050408, s36")
k("s_and_b32 s53, s53, 0xff")
k("s_cmp_eq_u32 s46, 0")
k("s_cselect_b32 s36, 3, 2")
k("v_bfe_u32 v8, v2, 2, 2")
k("v_mul_u32_u24 v8, s53, v8")
k("v_lshrrev_b32 v8, 1, v8")
k("v_and_b32 v9, 3, v2")
k("v_min_u32 v9, s36, v9")
k("v_add_u32 v8, v8, v9")
k("v_sub_u32 v8, s37, v8")
k("v_and_b32 v10, 48, v2")
k("v_add_u32 v10, s48, v10")
k(f"s_movk_i32 s36, {KT_PITCH}")
k("v_mad_u32_u24 v8, v8, s36, v10")
k("v_and_b32 v11, 15, v2")
k("v_mad_u32_u24 v9, v11, s36, v10")
k("s_waitcnt lgkmcnt(0)")
stamp(3)
k("s_barrier")
for ks in range(8):
    k(f"ds_read_b128 {v(16+8*ks,4)}, v8 offset:{64*ks}")
    k(f"ds_read_b128 {v(20+8*ks,4)}, v9 offset:{64*ks}")
poll("L_pu", ul, [112], 12, issued=True)
stamp(4)
k("s_cmp_eq_u32 s46, 3")
k("s_cselect_b32 s36, 0, -1")
k("v_and_b32 v12, s36, v114")
k("v_and_b32 v13, s36, v115")
k("s_add_u32 s36, s46, 1")
k("s_and_b32 s36, s36, 3")
k("s_lshl_b32 s37, s47, 2")
k("s_add_u32 s36, s36, s37")
k("s_lshl_b32 s36, s36, 3")
k(f"s_add_u32 s36, s36, {A_SLOT}")
k("v_mov_b32 v14, s36")
k("s_lshl_b32 s36, s3, 3")
k(f"s_add_u32 s36, s36, {A_SLOT}")
k("v_mov_b32 v15, s36")
k("s_mov_b32 exec_lo, 0"); k("s_brev_b32 exec_hi, 1")
k("ds_write_b64 v14, v[12:13]")
k("s_mov_b64 exec, -1")
for ks in range(8): mfma(80, 16+8*ks, 20+8*ks, 80 if ks else None)
k("s_waitcnt lgkmcnt(0)")
k("s_barrier")
k("ds_read_b64 v[98:99], v15")
k("s_lshl_b32 s36, s46, 10")
k("s_add_u32 s36, s36, s48")
k("v_add_u32 v12, s36, v3")
k(f"ds_write_b128 v12, v[112:115] offset:{3*U_PITCH+32}")
k("v_mov_b32 v101, v112"); k("v_mov_b32 v102, v113"); k("v_mov_b32 v103, v114")
k("v_alignbit_b32 v105, v113, v112, 16"); k("v_alignbit_b32 v106, v114, v113, 16"); k("v_alignbit_b32 v107, v115, v114, 16")
k("v_mov_b32 v110, v105"); k("v_mov_b32 v111, v106")
k("v_mov_b32 v13, 0")
k(f"s_mul_i32 s36, s46, {U_PITCH}")
k("s_add_u32 s36, s36, s48")
k("s_mul_i32 s37, s46, 120")
k("s_add_u32 s37, s37, s49")
k(f"s_add_u32 s37, s37, {4096-32}")
k("v_mov_b32 v14, s37"); k("v_mov_b32 v15, s36")
k("v_cmp_gt_u32 vcc, 8, v2")
k("v_cndmask_b32 v14, v14, v15, vcc")
k("v_lshl_add_u32 v14, v2, 2, v14")
k("s_mov_b32 exec_hi, 0x3f")
k("ds_write_b32 v14, v13")
k("s_mov_b64 exec, -1")
k("v_mov_b32_dpp v98, v114 wave_shr:1 row_mask:0xf bank_mask:0xf")
k("v_mov_b32_dpp v99, v115 wave_shr:1 row_mask:0xf bank_mask:0xf")
k("v_mov_b32 v100, v99")
k("v_alignbit_b32 v104, v112, v99, 16")
k("v_alignbit_b32 v108, v99, v98, 16")
k("v_mov_b32 v109, v104")
k(f"ds_write_b128 v12, v[100:103] offset:{U_PITCH+32}")
k(f"ds_write_b128 v12, v[104:107] offset:{2*U_PITCH+32}")
k("ds_write_b128 v12, v[108:111] offset:32")
k("v_lshlrev_b32 v13, 5, v11")
k("v_sub_u32 v13, s49, v13")
k("v_lshrrev_b32 v14, 4, v2")
k("s_cmp_eq_u32 s46, 2")
k("s_cbranch_scc1 L_ke2")
k("s_cmp_eq_u32 s46, 3")
k("s_cbranch_scc1 L_ke3")
with k.cond():
    k("v_lshl_add_u32 v14, v14, 3, v13")
    k("s_lshl_b32 s36, s46, 9")
    k("v_subrev_u32 v14, s36, v14")
    k("v_cvt_pk_bf16_f32 v84, v80, v81")
    k("v_cvt_pk_bf16_f32 v85, v82, v83")
    k("ds_write_b64 v14, v[84:85] offset:4064")
    k("s_branch L_kedone")
    k("L_ke2:")
    k("v_and_b32 v15, 16, v2")
    k("v_add_u32 v15, v15, v13")
    k("v_lshrrev_b32 v14, 5, v2")
    k("v_lshl_add_u32 v14, v14, 9, v15")
    k("v_cvt_pk_bf16_f32 v84, v80, v80"); k("v_cvt_pk_bf16_f32 v85, v81, v81")
    k("v_cvt_pk_bf16_f32 v86, v81, v82"); k("v_cvt_pk_bf16_f32 v87, v82, v82")
    k("ds_write_b128 v14, v[84:87] offset:2528")
    k("s_branch L_kedone")
    k("L_ke3:")
    k("v_lshl_add_u32 v14, v14, 9, v13")
    k("v_cvt_pk_bf16_f32 v84, v80, v80"); k("v_cvt_pk_bf16_f32 v86, v81, v81")
    k("v_cvt_pk_bf16_f32 v89, v81, v82"); k("v_cvt_pk_bf16_f32 v90, v82, v82")
    k("v_mov_b32 v85, v84"); k("v_mov_b32 v87, v86"); k("v_mov_b32 v88, v86"); k("v_mov_b32 v91, v90")
    k("ds_write_b128 v14, v[84:87] offset:480")
    k("ds_write_b128 v14, v[88:91] offset:496")
k("L_kedone:")
k("s_lshl_b32 s36, s46, 7")
k("v_and_b32 v10, 48, v2")
k("v_add3_u32 v9, v13, v10, s36")
k("v_and_b32 v8, 3, v2")
k(f"v_mul_u32_u24 v8, {U_PITCH}, v8")
k("v_and_b32 v14, 12, v2")
k("v_lshl_add_u32 v8, v14, 1, v8")
k("s_add_u32 s36, s36, s48")
k("v_add3_u32 v8, v8, v10, s36")
k("s_waitcnt lgkmcnt(0)")
stamp(5)
k("s_barrier")
ACC, FA, FB = 16, 48, 80
def rdA(q, rr):
    k(f"ds_read_b64 {v(FA+4*q,2)}, v8 offset:{8+512*q+64*rr}")
    k(f"ds_read_b64 {v(FA+4*q+2,2)}, v8 offset:{16+512*q+64*rr}")
def rdB(j, rr): k(f"ds_read_b128 {v(FB+4*j,4)}, v9 offset:{480+512*(7-j)+64*rr}")
for q in range(7, -1, -1):
    rdA(q, 0); rdB(7-q, 0)
for rr in range(2):
    for q in range(7, -1, -1):
        for j in range(8-q):
            t = q + j
            mfma(ACC+4*t, FA+4*q, FB+4*j, None if (rr == 0 and j == 0) else ACC+4*t)
            if rr == 0 and q == 0: rdB(j, 1)
        if rr == 0: rdA(q, 1)
stamp(6)
k("s_lshl_b32 s36, s46, 12")
k("s_add_u32 s36, s36, s48")
k("v_add_u32 v8, s36, v3")
k("s_lshl_b32 s36, s46, 10")
k("s_add_u32 s36, s36, s48")
k("v_add_u32 v9, s36, v3")
k("s_mov_b32 s36, 0xffff0000")
for d in range(4):
    for i in range(4): k(f"v_cvt_pk_bf16_f32 v{FA+4*d+i}, v{ACC+8*d+2*i}, v{ACC+8*d+2*i+1}")
    k(f"ds_write_b128 v8, {v(FA+4*d,4)} offset:{A_PART+1024*d}")
k("s_waitcnt lgkmcnt(0)")
k("s_barrier")
for s_ in range(4): k(f"ds_read_b128 {v(FB+4*s_,4)}, v9 offset:{A_PART+4096*s_}")
for i in range(4):
    k(f"v_lshlrev_b32 v{ACC+2*i}, 16, v{FB+i}")
    k(f"v_and_b32 v{ACC+2*i+1}, 0xffff0000, v{FB+i}")
for s_ in range(1, 4):
    for i in range(4):
        k(f"v_lshlrev_b32 v{ACC+8+2*i}, 16, v{FB+4*s_+i}")
        k(f"v_and_b32 v{ACC+9+2*i}, s36, v{FB+4*s_+i}")
    for i in range(8): k(f"v_add_f32 v{ACC+i}, v{ACC+i}, v{ACC+8+i}")
for i in range(4): k(f"v_cvt_pk_bf16_f32 v{FA+i}, v{ACC+2*i}, v{ACC+2*i+1}")
emit(tag_ins(FA, inv=True))
k(f"global_store_dwordx4 v3, {v(FA,4)}, s[40:41] sc1")
stamp(7)
k("s_cmp_eq_u32 s59, 0")
k("s_cbranch_scc1 L_end")

k("L_tile_out:")
k("s_lshr_b32 s36, s57, 3")
k("s_lshl_b32 s36, s36, 9")
k("s_bfe_u32 s37, s57, 0x20001")
k("s_lshl_b32 s37, s37, 2")
k("s_add_u32 s36, s36, s37")
k("s_and_b32 s37, s57, 1")
k("s_lshl_b32 s37, s37, 7")
k("s_add_u32 s36, s36, s37")
k("s_lshl_b32 s37, s3, 4")
k("s_add_u32 s36, s36, s37")
k("v_bfe_u32 v8, v0, 3, 2")
k("v_bfe_u32 v9, v0, 5, 1")
k("v_lshl_add_u32 v8, v9, 8, v8")
k("v_add_u32 v8, s36, v8")
k("v_and_b32 v9, 7, v0")
k("v_lshlrev_b32 v9, 4, v9")
k("s_lshl_b32 s37, s58, 7")
k("v_add_u32 v9, s37, v9")
k("s_movk_i32 s36, 1152")
k("v_mad_u32_u24 v10, v8, s36, v9")
k("global_load_dwordx4 v[12:15], v10, s[8:9]")
k("global_load_dwordx4 v[16:19], v9, s[20:21]")
k("s_movk_i32 s36, 2304")
k("v_mad_u32_u24 v10, v8, s36, v9")
k(f"v_subrev_u32 v120, {A_TAIL}, v120")
k(f"v_subrev_u32 v121, {A_TAIL}, v121")
k("s_waitcnt vmcnt(0)")
stamp(8)
yl = ["global_load_dwordx4 v[124:127], v122, s[60:61] sc1"]
emit(yl)
for i in range(4):
    k(f"v_lshlrev_b32 v{20+2*i}, 16, v{12+i}"); k(f"v_and_b32 v{21+2*i}, 0xffff0000, v{12+i}")
    k(f"v_lshlrev_b32 v28, 16, v{16+i}"); k(f"v_and_b32 v29, 0xffff0000, v{16+i}")
    k(f"v_mul_f32 v{20+2*i}, v{20+2*i}, v28"); k(f"v_mul_f32 v{21+2*i}, v{21+2*i}, v29")
    k(f"v_cvt_pk_bf16_f32 v{12+i}, v{20+2*i}, v{21+2*i}")
    k(f"v_lshlrev_b32 v{20+2*i}, 16, v{12+i}"); k(f"v_and_b32 v{21+2*i}, 0xffff0000, v{12+i}")
poll("L_py", yl, [124], 28, inv=True, issued=True, sleep=4)
stamp(9)
k("ds_write_b128 v120, v[124:127]")
k("s_waitcnt lgkmcnt(0)")
k("s_barrier")
for j in range(8): k(f"ds_read_u16_d16_hi v{32+j}, v121 offset:{128*j}")
for i in range(4):
    k(f"v_add_f32 v{32+2*i}, v{32+2*i}, v{20+2*i}"); k(f"v_add_f32 v{33+2*i}, v{33+2*i}, v{21+2*i}")
    k(f"v_cvt_pk_bf16_f32 v{12+i}, v{32+2*i}, v{33+2*i}")
k("global_store_dwordx4 v10, v[12:15], s[28:29]")
end_wave()

if PROF:
    k("L_prof:")
    k("s_waitcnt vmcnt(0)")
    stamp(15)
    k("s_mov_b64 exec, 1")
    k("s_lshl_b32 s36, s2, 3")
    k("s_add_u32 s36, s36, s3")
    k("s_lshl_b32 s36, s36, 6")
    k(f"s_add_u32 s36, s36, {STAMP_BASE}")
    k("v_mov_b32 v1, s36")
    k("s_waitcnt lgkmcnt(0)")
    k("s_mov_b32 s92, s96")
    for i in range(16): k(f"v_mov_b32 v{8+i}, s{64+2*i}")
    for i in range(4): k(f"global_store_dwordx4 v1, {v(8+4*i,4)}, s[32:33] offset:{16*i}")
    if DBGWG is not None:
        k("s_lshl_b32 s36, s2, 3"); k("s_add_u32 s36, s36, s3")
        k(f"s_cmp_lg_u32 s36, {DBGWG*8}")
        k("s_cbranch_scc1 L_exit")
        k("s_nop 4")
        for i in range(16): k(f"v_subrev_u32 v{8+i}, s64, v{8+i}")
        k("v_mov_b32 v1, 0")
        for i in range(4): k(f"global_store_dwordx4 v1, {v(8+4*i,4)}, s[30:31] offset:{16*i}")
k("L_exit:")
k("s_endpgm")

body = k.text()
mv, ms = k.maxregs()
assert mv < 128, mv
tb = build_tables()
hdr = open("cdna_kernels/" + NAME + ".s.ref").read().split("; Override launch")[0] if "--nohdr" not in sys.argv else ""
s = hdr + "; @launch grid=(512,1,1) block=(512,1,1) lds=81920\n"
s += f'.amdgcn_target "amdgcn-amd-amdhsa--gfx950"\n.text\n.globl {NAME}_kernel\n.p2align 8\n.type {NAME}_kernel,@function\n{NAME}_kernel:\n'
s += body
s += ".p2align 8\n.type L_tables,@object\nL_tables:\n"
q = tb.view(np.uint64)
for i in range(0, len(q), 8):
    s += ".quad " + ",".join(hex(int(x)) for x in q[i:i+8]) + "\n"
s += f".size L_tables, {len(tb)*4}\n"
s += f""".section .rodata,"a"
.p2align 6
.amdhsa_kernel {NAME}_kernel
  .amdhsa_next_free_vgpr 128
  .amdhsa_next_free_sgpr 100
  .amdhsa_accum_offset 128
  .amdhsa_group_segment_fixed_size 0
  .amdhsa_kernarg_size 104
  .amdhsa_user_sgpr_count 2
  .amdhsa_user_sgpr_kernarg_segment_ptr 1
  .amdhsa_system_sgpr_workgroup_id_x 1
.end_amdhsa_kernel
"""
open(OUT, "w").write(s)
print("instrs", len(k.ins), "maxv", mv, "maxs", ms, "bytes", len(s))
```

```python
import sys, numpy as np
from asmlib import Asm
from design import *

NAME = "concat_heads__ssm_conv_s4d__spectral_gfnet__prompt"
PROF = "--prof" in sys.argv
OUT = [a for a in sys.argv[1:] if not a.startswith("--")]
OUT = OUT[0] if OUT else "k.s"
STAMP_BASE = 0x8000000
DBGWG = None
ENC = None
for a_ in sys.argv:
    if a_.startswith("--dbgwg="): DBGWG = int(a_.split("=")[1])
    if a_.startswith("--enc="): ENC = int(a_.split("=")[1])

def build_tables():
    sa = stage_addr()
    p1 = p1_tables(); p3 = p3_tables(); p2 = p2_tables()
    def enc(t, name):
        if name == "ADDR": return sa
        if name.startswith("TW"): return f32_dw(t[name])
        if name.endswith("_x_16"):
            return np.concatenate([frag_dw(t[name.replace("_x_", "_0_")]), frag_dw(t[name.replace("_x_", "_1_")])], 1)
        return frag_dw(t[name])
    P1 = np.concatenate([enc(p1, n).reshape(-1) for n in P1_ORDER])
    P3 = np.concatenate([enc(p3, n).reshape(-1) for n in P3_ORDER])
    f1 = [frag_dw(p2[f"F1re_{w}_{k}"]).reshape(-1) for w in range(4) for k in range(4)]
    f2 = [frag_dw(p2[f"F2re_{t}_{k}"]).reshape(-1) for t in range(2) for k in range(2)]
    tw = np.zeros((2, 32, 68), np.uint32)
    tw[0, :, :64] = f32_dw(p2["TWc"]); tw[1, :, :64] = f32_dw(p2["TWs"])
    P2 = np.concatenate(f1 + f2 + [tw.reshape(-1)])
    P2 = np.concatenate([P2, np.zeros(10240 - len(P2), np.uint32)])
    wt = w_tables().copy()
    lane7 = ((np.arange(64) & 7) * 16).astype(np.uint32)[None, :, None]
    wt = (wt & 0xffff) | ((((wt >> 16) * 128) + lane7) << 16)
    WT = wt.reshape(4, 64, 2, 4).transpose(0, 2, 1, 3).reshape(-1)
    assert len(P1) == 4096 and len(P3) == 4096 and len(P2) == 10240 and len(WT) == 2048
    return np.concatenate([P1, P2, P3, WT]).astype(np.uint32)
T_P1, T_P2, T_P3, T_W = 0, 16384, 16384 + 40960, 16384 + 40960 + 16384

R0, R1, R2 = 0, 20480, 38912
L_F1, L_F2, L_TW = R2, R2 + 16384, R2 + 20480
KT_PITCH = 544
KT_SZ = 63 * KT_PITCH
A_TAIL = 2 * KT_SZ
K_SZ = 4576
A_SLOT = A_TAIL + 2 * K_SZ
U_PITCH = 4160
A_PART = 4 * U_PITCH
W_LDS_A = 34304
LINEB = NQ * 128

k = Asm()
nst = [0]
def stamp(i):
    if PROF: k(f"s_memrealtime s[{64+2*i}:{65+2*i}]")
def v(a, n=1): return f"v{a}" if n == 1 else f"v[{a}:{a+n-1}]"
def mfma(d, a, b, c=None, k16=False):
    cs = "0" if c is None else v(c, 4)
    if k16: k(f"v_mfma_f32_16x16x16_bf16 {v(d,4)}, {v(a,2)}, {v(b,2)}, {cs}")
    else: k(f"v_mfma_f32_16x16x32_bf16 {v(d,4)}, {v(a,4)}, {v(b,4)}, {cs}")
def tag_ins(d, inv=False):
    a, b, c, e = (d+2, d+3, d, d+1) if inv else (d, d+1, d+2, d+3)
    return [f"v_and_or_b32 v{a}, v{a}, s97, 1", f"v_or_b32 v{b}, s99, v{b}", f"v_and_or_b32 v{c}, v{c}, -2, s98", f"v_and_b32 v{e}, s97, v{e}"]
def emit(lst):
    for x in lst: k(x)
def check_ins(d, acc, inv=False):
    a, b, c, e = (d+2, d+3, d, d+1) if inv else (d, d+1, d+2, d+3)
    return [f"v_bitop3_b32 v{acc}, v{a}, v{c}, 1 bitop3:0xdb", f"v_bitop3_b32 v{acc}, v{acc}, v{b}, v{e} bitop3:0xfb"]
def poll(name, loads, grans, tmp, inv=False, issued=False, sleep=1, restore="-1"):
    if not issued: emit(loads)
    k(f"{name}_chk:")
    k("s_waitcnt vmcnt(0)")
    for i, g in enumerate(grans):
        emit(check_ins(g, tmp if i == 0 else tmp+1, inv))
        if i: k(f"v_or_b32 v{tmp}, v{tmp}, v{tmp+1}")
    k(f"v_and_b32 v{tmp}, s99, v{tmp}")
    k(f"v_cmp_ne_u32 vcc, 0, v{tmp}")
    k(f"s_cbranch_vccz {name}_ok")
    k("s_cmp_eq_u32 s96, 0")
    k(f"s_cbranch_scc1 {name}_ok")
    k("s_sub_u32 s96, s96, 1")
    k("s_wqm_b64 exec, vcc")
    if sleep: k(f"s_sleep {sleep}")
    emit(loads)
    k(f"s_branch {name}_chk")
    k(f"{name}_ok:")
    k(f"s_mov_b64 exec, {restore}")
def tw_ins(re, im, c, s, out, t, conjW=False):
    L = []
    for pp in range(2):
        e = [2*pp, 2*pp+1]
        L += [f"v_mul_f32 v{t+j}, v{re+x}, v{c+x}" for j, x in enumerate(e)]
        if conjW:
            L += [f"v_fma_f32 v{t+j}, -v{im+x}, v{s+x}, v{t+j}" for j, x in enumerate(e)]
            L += [f"v_mul_f32 v{im+x}, v{im+x}, v{c+x}" for x in e]
            L += [f"v_fmac_f32 v{im+x}, v{re+x}, v{s+x}" for x in e]
        else:
            L += [f"v_fmac_f32 v{t+j}, v{im+x}, v{s+x}" for j, x in enumerate(e)]
            L += [f"v_mul_f32 v{im+x}, v{im+x}, v{c+x}" for x in e]
            L += [f"v_fma_f32 v{im+x}, -v{re+x}, v{s+x}, v{im+x}" for x in e]
        ng = "-" if conjW else ""
        L += [f"v_cvt_pk_bf16_f32 v{out+x}, v{t+j}, {ng}v{im+x}" for j, x in enumerate(e)]
    return L
def interleave(major, minor):
    n = len(major); j = 0
    for i, m in enumerate(major):
        m() if callable(m) else k(m)
        tgt = (i + 1) * len(minor) // n
        while j < tgt:
            k(minor[j]); j += 1
def tbl_addr(off_expr_sreg, const):
    k(f"s_add_u32 s38, s34, {off_expr_sreg}")
    k("s_addc_u32 s39, s35, 0")
    if const:
        k(f"s_add_u32 s38, s38, {const}")
        k("s_addc_u32 s39, s39, 0")
    k("v_mov_b32 v5, s39")
    k("v_add_co_u32 v4, vcc, s38, v3")
    k("v_addc_co_u32 v5, vcc, 0, v5, vcc")
def dma_p2():
    k("s_mul_i32 s36, s3, 5120")
    tbl_addr("s36", T_P2)
    k(f"s_add_u32 m0, s36, {R2}")
    for i in range(4): k(f"global_load_lds_dwordx4 v[4:5], off offset:{1024*i}")
    k("v_add_co_u32 v4, vcc, 0x1000, v4")
    k("v_addc_co_u32 v5, vcc, 0, v5, vcc")
    k(f"s_add_u32 m0, s36, {R2+4096}")
    k("global_load_lds_dwordx4 v[4:5], off")
def dma_16k(toff, lds):
    k("s_lshl_b32 s36, s3, 11")
    tbl_addr("s36", toff)
    k(f"s_add_u32 m0, s36, {lds}")
    for i in range(2): k(f"global_load_lds_dwordx4 v[4:5], off offset:{1024*i}")
def row_sa():
    k("s_lshr_b32 s37, s2, 3")
    k("s_lshl_b32 s37, s37, 7")
    k("s_and_b32 s36, s2, 7")
    k("s_lshl_b32 s36, s36, 2")
    k("s_add_u32 s37, s37, s36")
    k("s_and_b32 s36, s3, 1")
    k("s_lshl_b32 s36, s36, 6")
    k("s_add_u32 s37, s37, s36")
    k("s_lshr_b32 s36, s3, 1")
    k("s_add_u32 s37, s37, s36")
def stage_addrs():
    k("s_lshl_b32 s36, s3, 3")
    for mu in range(3):
        k(f"v_xor_b32 v{58+2*mu}, s36, v{64+mu}")
        k(f"v_xor_b32 v{59+2*mu}, 64, v{58+2*mu}")
def lin_addrs():
    k("v_lshrrev_b32 v1, 4, v0")
    k("v_xor_b32 v1, v1, v0")
    k("v_and_b32 v1, 7, v1")
    k("v_and_b32 v4, 0x1f8, v0")
    k("v_or_b32 v1, v1, v4")
    k("v_lshlrev_b32 v1, 4, v1")
    k("v_lshlrev_b32 v4, 4, v0")
    k("v_add_u32 v5, 0x2000, v4")
    k("v_add_u32 v6, 0x4000, v4")
    k(f"s_mul_i32 s36, s2, {LINEB}")
    k("s_add_u32 s38, s32, s36")
    k("s_addc_u32 s39, s33, 0")
def end_wave():
    if PROF: k("s_branch L_prof")
    else: k("s_endpgm")

k("s_cmp_ge_u32 s2, 512")
k("s_cbranch_scc1 L_exit")
if PROF:
    for i in range(16): k(f"s_mov_b32 s{64+2*i}, 0")
stamp(0)
k("s_load_dwordx16 s[8:23], s[0:1], 0")
k("s_load_dwordx8 s[24:31], s[0:1], 64")
k("s_load_dwordx2 s[32:33], s[0:1], 96")
k("s_getpc_b64 s[34:35]")
k("L_pc:")
k("s_add_u32 s34, s34, L_tables-L_pc")
k("s_addc_u32 s35, s35, 0")
k("v_lshrrev_b32 v1, 6, v0")
k("v_and_b32 v2, 63, v0")
k("v_readfirstlane_b32 s3, v1")
k("v_lshlrev_b32 v3, 4, v2")
k("s_mov_b32 s96, 0x4000")
k("s_mov_b32 s97, 0xfffefffe")
k("s_mov_b32 s98, 0x10000")
k("s_mov_b32 s99, 0x10001")
k("s_cmp_ge_u32 s2, 256")
k("s_cbranch_scc1 L_A2")
k("s_cmp_ge_u32 s2, 128")
k("s_cbranch_scc1 L_AUX")

k("s_setprio 2")
dma_16k(T_P1, R0)
row_sa()
k("v_cmp_lt_u32 vcc, 7, v2")
k("v_mov_b32 v7, 35712")
k("v_cndmask_b32 v6, 0, v7, vcc")
k("v_add_u32 v6, v6, v3")
k("v_add_u32 v7, v7, v3")
k("s_mul_i32 s36, s37, 1152")
k("s_mul_i32 s40, s3, 2304")
k(f"s_add_u32 s40, s40, {R1}")
k("s_mov_b32 m0, s40")
k("s_waitcnt lgkmcnt(0)")
k("s_add_u32 s38, s22, s36")
k("s_addc_u32 s39, s23, 0")
k("global_load_lds_dwordx4 v3, s[38:39]")
k("global_load_lds_dwordx4 v6, s[38:39] offset:1024")
k("s_mov_b64 exec, 0xffff")
k("global_load_lds_dwordx4 v7, s[38:39] offset:2048")
k("s_mov_b64 exec, -1")
k("v_lshrrev_b32 v8, 4, v2")
k("v_cmp_ne_u32 vcc, 3, v8")
k("v_bfe_u32 v9, v2, 2, 2")
k("v_cndmask_b32 v8, 0, v8, vcc")
k("v_lshl_add_u32 v8, v8, 3, v9")
k("v_mul_u32_u24 v8, 48, v8")
k("v_add_u32 v8, s40, v8")
k("v_and_b32 v9, 3, v2")
k("v_lshl_add_u32 v6, v9, 3, v8")
k("v_and_b32 v9, 1, v2")
k("v_lshl_add_u32 v7, v9, 3, v8")
k("v_bfe_u32 v9, v2, 1, 1")
k("v_mul_u32_u24 v9, 1152, v9")
k("v_add_u32 v7, v7, v9")
k("s_waitcnt vmcnt(3)")
k("s_barrier")
for i in range(16): k(f"ds_read_b128 {v(64+4*i,4)}, v3 offset:{R0+1024*i}")
dma_p2()
stage_addrs()
k("s_waitcnt lgkmcnt(0)")
k("s_barrier")
k("s_waitcnt vmcnt(5)")
stamp(1)
k("ds_read_b64_tr_b16 v[8:9], v6")
k("ds_read_b64_tr_b16 v[10:11], v6 offset:192")
k("ds_read_b64_tr_b16 v[12:13], v6 offset:1152")
k("ds_read_b64_tr_b16 v[14:15], v6 offset:1344")
k("ds_read_b64_tr_b16 v[16:17], v7 offset:32")
k("ds_read_b64_tr_b16 v[18:19], v7 offset:224")
for t in range(3):
    mfma(20+8*t, 8+4*t, 68); mfma(24+8*t, 8+4*t, 72)
A2 = lambda mu, vv: 92 + 12*mu + 4*vv
emit(tw_ins(20, 24, 76, 80, 44, 56))
interleave([lambda mu=mu: mfma(8+4*mu, A2(mu, 0), 44) for mu in range(3)], tw_ins(28, 32, 76, 80, 48, 56))
interleave([lambda mu=mu: mfma(20+4*mu, A2(mu, 0), 48) for mu in range(3)], tw_ins(36, 40, 84, 88, 52, 56))
for mu in range(3):
    mfma(8+4*mu, A2(mu, 1), 52, 8+4*mu); mfma(20+4*mu, A2(mu, 2), 52, 20+4*mu)
lin_addrs()
for mu in range(3):
    for col in range(2):
        o = 32 + 4*mu + 2*col
        k(f"v_cvt_pk_bf16_f32 v{o}, v{8+4*mu+2*col}, v{9+4*mu+2*col}")
        k(f"v_cvt_pk_bf16_f32 v{o+1}, v{20+4*mu+2*col}, v{21+4*mu+2*col}")
        k(f"ds_write_b64 v{58+2*mu+col}, {v(o,2)}")
k("s_waitcnt vmcnt(0) lgkmcnt(0)")
k("s_barrier")
for i in range(3): k(f"ds_read_b128 {v(8+4*i,4)}, v1 offset:{8192*i}")
for i in range(2):
    emit(tag_ins(8+4*i)); k(f"global_store_dwordx4 v{4+i}, {v(8+4*i,4)}, s[38:39] sc1")
k("v_cmp_gt_u32 vcc, 136, v0")
emit(tag_ins(16))
k("s_and_saveexec_b64 s[40:41], vcc")
k("s_cbranch_execz L_x1done")
with k.cond(): k("global_store_dwordx4 v6, v[16:19], s[38:39] sc1")
k("L_x1done:")
k("s_mov_b64 exec, -1")
stamp(2)

k("L_P2:")
k("s_and_b32 s46, s3, 3")
k("s_lshr_b32 s47, s3, 2")
k("s_lshl_b32 s36, s46, 12")
k("v_add_u32 v4, s36, v3")
for i in range(4): k(f"ds_read_b128 {v(64+4*i,4)}, v4 offset:{L_F1+1024*i}")
for i in range(4): k(f"ds_read_b128 {v(96+4*i,4)}, v3 offset:{L_F2+1024*i}")
k("v_lshrrev_b32 v5, 4, v2")
k("v_and_b32 v6, 15, v2")
k("v_mul_u32_u24 v7, 1088, v5")
k("v_lshl_add_u32 v7, v6, 2, v7")
k("s_lshl_b32 s36, s46, 6")
k(f"s_add_u32 s48, s36, {L_TW}")
k("v_add_u32 v7, s48, v7")
for cs in range(2):
    for mu in range(2):
        d = 32 + 8*cs + 4*mu
        if cs or mu: k(f"v_add_u32 v7, 4352, v7")
        k(f"ds_read2_b32 {v(d,2)}, v7 offset1:68")
        k(f"ds_read2_b32 {v(d+2,2)}, v7 offset0:136 offset1:204")
k("v_lshrrev_b32 v8, 2, v6")
k("v_lshl_add_u32 v9, v5, 3, v8")
k("v_lshl_add_u32 v10, v8, 3, v5")
k("v_and_b32 v8, 3, v2")
k("v_lshlrev_b32 v8, 4, v8")
k(f"s_movk_i32 s36, {LINEB}")
k("v_mad_u32_u24 v1, v9, s36, v8")
k("v_mad_u32_u24 v11, v10, s36, v8")
k(f"s_mul_i32 s36, s46, {32*LINEB}")
k("s_lshl_b32 s37, s2, 7")
k("s_add_u32 s36, s36, s37")
k("s_lshl_b32 s37, s47, 6")
k("s_add_u32 s36, s36, s37")
k("s_add_u32 s40, s32, s36")
k("s_addc_u32 s41, s33, 0")
k(f"s_add_u32 s42, s40, {4*LINEB}")
k("s_addc_u32 s43, s41, 0")
k(f"s_add_u32 s50, s40, {WB}")
k("s_addc_u32 s51, s41, 0")
k(f"s_add_u32 s52, s42, {WB}")
k("s_addc_u32 s53, s43, 0")
k("v_mul_u32_u24 v2, 272, v6")
k("v_lshl_add_u32 v2, v5, 4, v2")
k("v_add_u32 v2, s48, v2")
k("s_lshl_b32 s36, s47, 13")
k("v_add_u32 v3, s36, v3")
k("s_lshl_b32 s36, s46, 10")
k("v_add_u32 v4, s36, v3")
sc2 = np.float32(2.0/(S*D)).view(np.uint32); sc1 = np.float32(1.0/(S*D)).view(np.uint32)
k("s_lshl_b32 s36, s2, 1")
k("s_add_u32 s36, s36, s47")
k(f"s_mov_b32 s54, {hex(sc2)}")
k("s_cmp_eq_u32 s36, 0")
k(f"s_cselect_b32 s54, {hex(sc1)}, s54")
k(f"s_cmp_eq_u32 s36, {2*Q288}")
k(f"s_cselect_b32 s54, {hex(sc1)}, s54")
k(f"s_cmp_eq_u32 s36, {2*Q288+1}")
k("s_cselect_b32 s54, 0, s54")
k("s_mov_b32 s55, 0x8000")
xl = ["global_load_dwordx4 v[56:59], v1, s[40:41] sc1", "global_load_dwordx4 v[60:63], v1, s[42:43] sc1",
      "global_load_dwordx4 v[48:51], v11, s[50:51] sc1", "global_load_dwordx4 v[52:55], v11, s[52:53] sc1"]
k("s_waitcnt vmcnt(0)")
stamp(3)
emit(xl)
for i in range(16): k(f"v_pk_add_u16 v{80+i}, v{64+i}, s55 op_sel:[1,0] op_sel_hi:[0,1]")
for i in range(16): k(f"v_pk_add_u16 v{112+i}, v{96+i}, s55 op_sel:[1,0] op_sel_hi:[0,1]")
for i in range(16): k(f"v_mul_f32 v{32+i}, s54, v{32+i}")
k("v_mov_b32 v16, s98"); k("v_mov_b32 v17, 0"); k("v_mov_b32 v18, 1"); k("v_mov_b32 v19, s99")
poll("L_px", xl, [56, 60, 48, 52], 6, issued=True)
stamp(4)
k(f"ds_write_b128 v4, v[56:59] offset:{R1}")
k(f"ds_write_b128 v4, v[60:63] offset:{R1+4096}")
k("global_store_dwordx4 v11, v[16:19], s[50:51] sc1")
k("global_store_dwordx4 v11, v[16:19], s[52:53] sc1")
k("s_waitcnt lgkmcnt(0)")
stamp(8)
k("s_barrier")
stamp(9)
dreg = {(0,0): 56, (0,1): 60, (0,2): 24, (0,3): 28, (1,0): 8, (1,1): 12, (1,2): 56, (1,3): 60}
rd = lambda mu, kp: k(f"ds_read_b128 {v(dreg[mu,kp],4)}, v3 offset:{R1+1024*(4*mu+kp)}")
for key in [(0,0),(0,1),(0,2),(0,3),(1,0),(1,1)]: rd(*key)
for kp in range(4):
    mfma(16, dreg[0,kp], 64+4*kp, 16 if kp else None); mfma(20, dreg[0,kp], 80+4*kp, 20 if kp else None)
    if kp < 2: rd(1, 2+kp)
m1 = []
for kp in range(4):
    m1 += [lambda kp=kp: mfma(24, dreg[1,kp], 64+4*kp, 24 if kp else None), lambda kp=kp: mfma(28, dreg[1,kp], 80+4*kp, 28 if kp else None)]
m1[0](); m1[1]()
interleave(m1[2:], tw_ins(16, 20, 32, 40, 32, 6))
F2re = lambda t, ks: 96 + 8*t + 4*ks
F2im = lambda t, ks: 112 + 8*t + 4*ks
acc2 = {0: (16, 20), 1: (8, 12)}
unp = lambda src, wr, wi: [x for r in range(4) for x in (f"v_lshlrev_b32 v{wr+r}, 16, v{src+r}", f"v_and_b32 v{wi+r}, 0xffff0000, v{src+r}")]
s2k = lambda ks, T: [f for t in range(2) for f in (lambda t=t: mfma(acc2[t][0], F2re(t, ks), T, acc2[t][0] if ks else None), lambda t=t: mfma(acc2[t][1], F2im(t, ks), T, acc2[t][1] if ks else None))]
interleave(s2k(0, 32), unp(48, 56, 60))
emit(tw_ins(24, 28, 36, 44, 36, 6))
k("ds_read_b128 v[24:27], v2")
k("ds_read_b128 v[28:31], v2 offset:8704")
interleave(s2k(1, 36), unp(52, 40, 44))
k("ds_read_b128 v[48:51], v2 offset:4352")
k("ds_read_b128 v[52:55], v2 offset:13056")
emit(tw_ins(16, 20, 56, 60, 56, 6, conjW=True))
acc3 = {0: (32, 36), 1: (16, 20)}
s3k = lambda ks, Y: [f for t in range(2) for f in (lambda t=t: mfma(acc3[t][0], Y, F2re(t, ks), acc3[t][0] if ks else None), lambda t=t: mfma(acc3[t][1], Y, F2im(t, ks), acc3[t][1] if ks else None))]
interleave(s3k(0, 56), tw_ins(8, 12, 40, 44, 40, 6, conjW=True))
for f in s3k(1, 40): f()
emit(tw_ins(32, 36, 24, 28, 24, 6))
k(f"ds_write_b128 v4, v[24:27] offset:{R0}")
emit(tw_ins(16, 20, 48, 52, 48, 6))
k(f"ds_write_b128 v4, v[48:51] offset:{R0+4096}")
k("s_waitcnt lgkmcnt(0)")
stamp(10)
k("s_barrier")
stamp(11)
for i in range(8): k(f"ds_read_b128 {v(96+4*i,4)}, v3 offset:{R0+1024*i}")
for nu in range(2):
    for kp in range(4):
        mfma(8+8*nu, 64+4*kp, 96+16*nu+4*kp, 8+8*nu if kp else None); mfma(12+8*nu, 80+4*kp, 96+16*nu+4*kp, 12+8*nu if kp else None)
stamp(12)
for nu in range(2):
    for r in range(4): k(f"v_cvt_pk_bf16_f32 v{24+4*nu+r}, v{8+8*nu+r}, v{12+8*nu+r}")
    emit(tag_ins(24+4*nu, inv=True))
    k(f"global_store_dwordx4 v1, {v(24+4*nu,4)}, s[{40+2*nu}:{41+2*nu}] sc1")
stamp(5)
k("s_cmp_ge_u32 s2, 128")
k("s_cbranch_scc1 L_end")

k("v_and_b32 v2, 63, v0")
k("v_lshlrev_b32 v3, 4, v2")
dma_16k(T_P3, R1)
lin_addrs()
k("s_movk_i32 s36, 136")
k("v_cmp_gt_u32 vcc, s36, v0")
k("v_cndmask_b32 v6, v4, v6, vcc")
k("s_mov_b64 s[44:45], vcc")
row_sa()
k("s_waitcnt vmcnt(0)")
stamp(6)
zl = [f"global_load_dwordx4 {v(8+4*i,4)}, v{4+i}, s[38:39] sc1" for i in range(3)]
emit(zl)
k("s_barrier")
for i in range(16): k(f"ds_read_b128 {v(64+4*i,4)}, v3 offset:{R1+1024*i}")
k("v_mov_b32 v20, 0")
k("v_lshlrev_b32 v21, 2, v2")
k("v_and_b32 v21, 0x7f, v21")
k(f"ds_write_b32 v21, v20 offset:{R0+NQ*128}")
stage_addrs()
k("s_mul_i32 s40, s3, 2304")
k(f"s_add_u32 s40, s40, {R2}")
k("v_and_b32 v20, 15, v2")
k("v_mul_u32_u24 v20, 48, v20")
k("v_add_u32 v20, s40, v20")
k("v_lshrrev_b32 v21, 4, v2")
k("v_lshl_add_u32 v56, v21, 3, v20")
k("v_and_b32 v21, 1, v21")
k("v_lshl_add_u32 v57, v21, 3, v20")
k("v_lshrrev_b32 v21, 5, v2")
k("v_mul_u32_u24 v21, 1152, v21")
k("v_add_u32 v57, v57, v21")
poll("L_pz", zl, [8, 12, 16], 20, inv=True, issued=True)
stamp(7)
k("ds_write_b128 v1, v[8:11]")
k("ds_write_b128 v1, v[12:15] offset:8192")
k("s_mov_b64 exec, s[44:45]")
k("s_cbranch_execz L_zw")
with k.cond(): k("ds_write_b128 v1, v[16:19] offset:16384")
k("L_zw:")
k("s_mov_b64 exec, -1")
k("s_waitcnt lgkmcnt(0)")
k("s_barrier")
for i, d in enumerate([20, 24, 22, 26, 28, 30]): k(f"ds_read_b64 {v(d,2)}, v{58+i}")
k("v_cmp_lt_u32 vcc, 7, v2")
k(f"v_mov_b32 v5, {32*2304-1152}")
k("v_add_u32 v1, s40, v3")
k("v_cndmask_b32 v4, 0, v5, vcc")
k("v_add_u32 v4, v4, v3")
k("v_add_u32 v5, v5, v3")
k("s_mul_i32 s36, s37, 2304")
k("s_add_u32 s36, s36, 1152")
k("s_add_u32 s38, s28, s36")
k("s_addc_u32 s39, s29, 0")
k("v_swap_b32 v21, v24"); k("v_swap_b32 v23, v26"); k("v_swap_b32 v29, v30")
B3 = lambda vv, cp: 68 + 12*vv + 4*cp
B316 = lambda vv, cp: 76 + 12*vv + 2*cp
mfma(32, 20, B3(0,0)); mfma(36, 20, B3(0,1)); mfma(32, 28, B316(0,0), 32, True); mfma(36, 28, B316(0,1), 36, True)
mfma(40, 24, B3(0,0)); mfma(44, 24, B3(0,1)); mfma(40, 30, B316(0,0), 40, True); mfma(44, 30, B316(0,1), 44, True)
ms = [lambda: mfma(48, 20, B3(1,0)), lambda: mfma(52, 20, B3(1,1)), lambda: mfma(48, 28, B316(1,0), 48, True), lambda: mfma(52, 28, B316(1,1), 52, True),
      lambda: mfma(48, 24, B3(2,0), 48), lambda: mfma(52, 24, B3(2,1), 52), lambda: mfma(48, 30, B316(2,0), 48, True), lambda: mfma(52, 30, B316(2,1), 52, True)]
interleave(ms, tw_ins(32, 36, 104, 108, 8, 6) + tw_ins(40, 44, 104, 108, 12, 6))
interleave([lambda: mfma(20, 8, 120), lambda: mfma(24, 8, 124), lambda: mfma(32, 12, 120), lambda: mfma(36, 12, 124)], ["s_nop 0"]*4)
emit(tw_ins(48, 52, 112, 116, 16, 6))
mfma(40, 16, 120); mfma(44, 16, 124)
def outw(acc, areg, off):
    k(f"v_cvt_pk_bf16_f32 v{acc}, v{acc}, v{acc+1}")
    k(f"v_cvt_pk_bf16_f32 v{acc+1}, v{acc+2}, v{acc+3}")
    return f"ds_write_b64 v{areg}, {v(acc,2)} offset:{off}"
k(outw(20, 56, 0)); k(outw(32, 56, 1152))
w1 = [outw(24, 56, 768), outw(36, 56, 1920)]
k(outw(40, 57, 32))
w1.append(outw(44, 57, 800))
k("s_mov_b32 exec_lo, 0x00ff00ff"); k("s_mov_b32 exec_hi, 0x00ff00ff")
emit(w1)
k("s_mov_b64 exec, -1")
k("s_waitcnt lgkmcnt(0)")
for i in range(3): k(f"ds_read_b128 {v(8+4*i,4)}, v1 offset:{1024*i}")
k("global_store_dwordx4 v3, v[8:11], s[38:39]")
k("global_store_dwordx4 v4, v[12:15], s[38:39] offset:1024")
k("s_mov_b64 exec, 0xffff")
k("global_store_dwordx4 v5, v[16:19], s[38:39] offset:2048")
k("L_end:")
end_wave()

def tile_setup():
    k("s_and_b32 s57, s56, 31")
    k("s_lshr_b32 s58, s56, 5")
    k("s_lshl_b32 s36, s3, 4")
    k("v_lshlrev_b32 v120, 4, v0")
    k("v_xor_b32 v120, s36, v120")
    k("v_and_b32 v4, 7, v0")
    k("v_xor_b32 v5, s3, v4")
    k("v_lshlrev_b32 v5, 4, v5")
    k("v_lshl_or_b32 v5, v4, 10, v5")
    k("v_bfe_u32 v6, v0, 3, 3")
    k("v_lshl_or_b32 v121, v6, 1, v5")
    k("v_lshrrev_b32 v6, 3, v0")
    k("v_lshlrev_b32 v4, 4, v4")
    k("v_lshl_or_b32 v122, v6, 12, v4")
    k("s_movk_i32 s36, 1152")
    k("v_mad_u32_u24 v7, v6, s36, v4")
def tile_load():
    k(f"s_mul_i32 s36, s57, {64*1152}")
    k("s_lshl_b32 s37, s58, 7")
    k("s_add_u32 s36, s36, s37")
    k("s_add_u32 s38, s8, s36")
    k("s_addc_u32 s39, s9, 0")
    k("global_load_dwordx4 v[124:127], v7, s[38:39]")
    k("s_lshl_b32 s36, s58, 18")
    k("s_lshl_b32 s37, s57, 7")
    k("s_add_u32 s36, s36, s37")
    k(f"s_add_u32 s36, s36, {UB}")
    k("s_add_u32 s60, s32, s36")
    k("s_addc_u32 s61, s33, 0")
def tile_in_code(t0):
    k(f"v_add_u32 v120, {A_TAIL}, v120")
    k(f"v_add_u32 v121, {A_TAIL}, v121")
    k("ds_write_b128 v120, v[124:127]")
    k("s_waitcnt lgkmcnt(0)")
    k("s_barrier")
    for j in range(8): k(f"ds_read_u16 v{t0+j}, v121 offset:{128*j}")
    for j in range(4): k(f"v_lshl_or_b32 v{124+j}, v{t0+2*j+1}, 16, v{t0+2*j}")
    emit(tag_ins(124))
    k("global_store_dwordx4 v122, v[124:127], s[60:61] sc1")

k("L_AUX:")
k("s_cmp_ge_u32 s2, 145")
k("s_cbranch_scc1 L_aux1")
k("s_setprio 2")
with k.cond(): dma_p2()
k("L_aux1:")
k("s_sub_u32 s56, s2, 145")
k("s_cmp_lt_u32 s56, 32")
k("s_cselect_b32 s59, 1, 0")
k("s_add_u32 s56, s56, 256")
tile_setup()
k("s_cmp_lt_u32 s3, 4")
k("s_cbranch_scc1 L_aux_lo")
k("s_sub_u32 s46, s3, 4")
k("s_lshl_b32 s36, s46, 11")
tbl_addr("s36", T_W)
k("global_load_dwordx4 v[64:67], v[4:5], off")
k("global_load_dwordx4 v[68:71], v[4:5], off offset:1024")
k("v_mul_u32_u24 v8, 79, v2")
k("v_lshrrev_b32 v8, 10, v8")
k("v_mul_u32_u24 v9, 370, v8")
k("v_add_u32 v9, v9, v3")
k("v_and_b32 v8, 1, v8")
k("v_lshlrev_b32 v8, 1, v8")
k("v_sub_u32 v9, v9, v8")
k("s_cmp_lt_u32 s2, 145")
k(f"s_cselect_b32 s47, 0, {W_LDS_A}")
k("s_mul_i32 s36, s46, 6656")
k("s_add_u32 s47, s47, s36")
k("s_sub_u32 s48, s2, 128")
k("s_lshr_b32 s36, s48, 3")
k("s_lshl_b32 s36, s36, 2")
k("s_and_b32 s37, s48, 7")
k("s_lshl_b32 s37, s37, 8")
k("s_add_u32 s36, s36, s37")
k("s_mul_i32 s36, s36, 578")
k("s_min_u32 s37, s46, 2")
k("s_mul_i32 s37, s37, 192")
k("s_add_u32 s49, s36, s37")
k("s_waitcnt lgkmcnt(0)")
for a, base in ((0, 40), (1, 52)):
    k(f"s_mov_b32 s{base}, s{24+2*a}")
    k(f"s_mov_b32 s{base+1}, s{25+2*a}")
    k(f"s_mov_b32 s{base+2}, {2048*289*2}")
    k(f"s_mov_b32 s{base+3}, 0x20000")
k("s_mov_b32 exec_hi, 0xfffff")
k("s_mov_b32 m0, s47")
for psi in range(4):
    for a, base in ((0, 40), (1, 52)):
        k(f"buffer_load_dwordx4 v9, s[{base}:{base+3}], s49 offen lds")
        if (psi, a) != (3, 1): k("s_add_u32 m0, m0, 832")
    if psi < 3: k(f"s_add_u32 s49, s49, {64*578}")
k("s_mov_b64 exec, -1")
k("s_cmp_eq_u32 s59, 0")
k("s_cbranch_scc1 L_wg")
with k.cond():
    tile_load()
    tile_in_code(8)
k("L_wg:")
k(f"s_mul_i32 s36, s48, {LINEB}")
k(f"s_add_u32 s36, s36, {WB}")
k("s_add_u32 s38, s32, s36")
k("s_addc_u32 s39, s33, 0")
k("s_waitcnt vmcnt(0)")
stamp(1)
def w_reads(rd):
    k(f"v_and_b32 v{72+rd}, 0xffff, v{64+rd}")
    k(f"v_add_u32 v{72+rd}, s47, v{72+rd}")
    for j in range(8): k(f"ds_read_u16 v{8+8*rd+j}, v{72+rd} offset:{832*j}")
def w_out(rd):
    k(f"v_lshrrev_b32 v{64+rd}, 16, v{64+rd}")
    for j in range(4): k(f"v_lshl_or_b32 v{80+4*rd+j}, v{8+8*rd+2*j+1}, 16, v{8+8*rd+2*j}")
    emit(tag_ins(80+4*rd))
    k(f"global_store_dwordx4 v{64+rd}, {v(80+4*rd,4)}, s[38:39] sc1")
w_reads(0)
k("s_cmp_eq_u32 s46, 3")
k("s_cbranch_scc1 L_wlast")
for rd in range(1, 6):
    w_reads(rd)
    if rd > 1: w_out(rd-1)
w_out(5)
k("L_wlast:")
k("s_waitcnt lgkmcnt(0)")
w_out(0)
stamp(2)
k("s_cmp_lt_u32 s2, 145")
k("s_cbranch_scc1 L_auxB")
k("s_cmp_eq_u32 s59, 1")
k("s_cbranch_scc1 L_tile_out")
end_wave()
k("L_aux_lo:")
k("s_waitcnt lgkmcnt(0)")
k("s_cmp_lt_u32 s2, 145")
k("s_cbranch_scc1 L_auxB")
k("s_cmp_eq_u32 s59, 0")
k("s_cbranch_scc1 L_aux_ch")
tile_load()
tile_in_code(8)
k("s_branch L_tile_out")
k("L_auxB:")
k("s_waitcnt vmcnt(0)")
k("s_barrier")
k("s_branch L_P2")
k("L_aux_ch:")
k("s_cmp_ge_u32 s2, 241")
k("s_cbranch_scc1 L_end")
k(f"s_add_u32 s62, s2, {512-177}")
k("s_branch L_Ach")

k("L_A2:")
k("s_sub_u32 s56, s2, 256")
k("s_mov_b32 s59, 1")
k("s_lshl_b32 s62, s56, 1")
k("s_lshr_b32 s36, s3, 2")
k("s_add_u32 s62, s62, s36")
tile_setup()
k("s_waitcnt lgkmcnt(0)")
k("L_Ach:")
k("s_and_b32 s36, s62, -2")
k("s_lshl_b32 s36, s36, 1")
k("s_load_dword s63, s[18:19], s36")
k("v_and_b32 v8, 127, v0")
k("s_lshl_b32 s36, s62, 7")
k("v_add_lshl_u32 v8, v8, s36, 1")
for i in range(4): k(f"global_load_ushort v{10+i}, v8, s[{10+2*i}:{11+2*i}]")
k("s_cmp_eq_u32 s59, 0")
k("s_cbranch_scc1 L_A_nt0")
with k.cond(): tile_load()
k("L_A_nt0:")
k("s_and_b32 s46, s3, 3")
k("s_lshr_b32 s47, s3, 2")
k(f"s_mul_i32 s48, s47, {KT_SZ}")
k(f"s_mul_i32 s49, s47, {K_SZ}")
k(f"s_add_u32 s49, s49, {A_TAIL}")
k("s_and_b32 s36, s46, 1")
k("s_lshl_b32 s36, s36, 8")
k("s_add_u32 m0, s48, s36")
k("s_cmp_lt_u32 s46, 2")
k("s_cselect_b32 s50, 1.0, 2.0")
k("s_mov_b32 s51, 0x43800000")
k("s_cselect_b32 s51, 0x41800000, s51")
k("s_mov_b32 s52, 0x3fb8aa3b")
k("s_lshl_b32 s36, s62, 12")
k("s_lshl_b32 s37, s46, 10")
k("s_add_u32 s36, s36, s37")
k(f"s_add_u32 s36, s36, {UB}")
k("s_add_u32 s40, s32, s36")
k("s_addc_u32 s41, s33, 0")
k("s_waitcnt lgkmcnt(0)")
k("s_and_b32 s36, s62, 1")
k("s_lshl_b32 s36, s36, 4")
k("s_lshr_b32 s63, s63, s36")
k("s_lshl_b32 s63, s63, 16")
k("v_mov_b32 v9, s52")
k("v_mul_f32 v9, s63, v9")
k("v_exp_f32 v9, v9")
k("v_cvt_pk_bf16_f32 v9, v9, v9")
k("v_and_b32 v9, 0xffff0000, v9")
for i in range(4): k(f"v_lshlrev_b32 v{10+i}, 16, v{10+i}")
stamp(1)
k("v_mul_f32 v10, s52, v10")
k("v_exp_f32 v10, v10")
k("v_mul_f32 v11, v11, v9")
k("v_cvt_pk_bf16_f32 v10, v10, v10")
k("v_and_b32 v10, 0xffff0000, v10")
k("v_mul_f32 v10, v10, v9")
k("v_mul_f32 v11, 0.15915494, v11")
k("v_mul_f32 v10, s52, v10")
k("v_add_f32 v9, v9, v9")
k("v_mul_f32 v12, v12, v9")
k("v_mul_f32 v13, v13, v9")
for e, sp in ((14, 50), (16, 51)):
    k(f"v_mul_f32 v18, s{sp}, v10")
    k(f"v_mul_f32 v19, s{sp}, v11")
    k("v_exp_f32 v18, -v18")
    k("v_fract_f32 v19, v19")
    k(f"v_cos_f32 v{e}, v19")
    k(f"v_sin_f32 v{e+1}, v19")
    k(f"v_mul_f32 v{e}, v{e}, v18")
    k(f"v_mul_f32 v{e+1}, v{e+1}, v18")
k("s_cmp_eq_u32 s59, 0")
k("s_cbranch_scc1 L_A_nt1")
with k.cond(): tile_in_code(20)
k("L_A_nt1:")
stamp(2)
def cmul(d, a, e, t):
    return [f"v_mul_f32 v{t}, v{a}, v{e}\nv_mul_f32 v{t+1}, v{a}, v{e+1}",
            f"v_fma_f32 v{d}, -v{a+1}, v{e+1}, v{t}\nv_fma_f32 v{d+1}, v{a+1}, v{e}, v{t+1}"]
cv = [0]
def put(src, row):
    c = 40 + (cv[0] & 3); cv[0] += 1
    return [f"v_cvt_pk_bf16_f32 v{c}, v{src}, v{src+1}", f"ds_write_addtid_b32 v{c} offset:{row*KT_PITCH}"]
def zipemit(*seqs):
    n = max(len(s) for s in seqs)
    for i in range(n):
        for s in seqs:
            if i < len(s): k(s[i])
ul = ["global_load_dwordx4 v[112:115], v3, s[40:41] sc1"]
k("s_cmp_ge_u32 s46, 2")
k("s_cbranch_scc1 L_kg1")
k("v_xor_b32 v17, 0x80000000, v17")
k("v_mov_b32 v44, 0x3f80")
k("ds_write_addtid_b32 v44")
k("v_mov_b32 v20, v16"); k("v_mov_b32 v21, v17")
for st in range(16):
    a = put(12, 16+st); b = put(20, 1+st) if st < 15 else []
    ca = cmul(12, 12, 14, 22) if st < 15 else []
    cb = cmul(20, 20, 16, 24) if st < 14 else []
    zipemit([a[0]] + ca[:1] + [a[1]] + ca[1:], b[:1] + cb[:1] + b[1:] + cb[1:])
    if st == 11: emit(ul)
k("s_branch L_kgdone")
k("L_kg1:")
H = [20 + 2*m for m in range(9)]
emit(cmul(H[0], 12, 16, 38))
for m in range(9):
    a = put(H[m], 32+m)
    ca = cmul(H[m+1], H[m], 14, 38) if m < 8 else []
    zipemit(ca, a)
for t in range(2):
    for m in range(5):
        emit(cmul(H[2*m], H[2*m], 16, 44 + 2*(m & 1)))
    for m in range(5): emit(put(H[2*m], 41+5*t+m))
for t in range(4):
    if t == 2: emit(ul)
    for m in range(3): emit(cmul(H[4*m], H[4*m], 16, 44 + 2*(m & 1)))
    for m in range(3): emit(put(H[4*m], 51+3*t+m))
k("L_kgdone:")
k("s_lshl_b32 s36, s46, 3")
k("s_lshr_b32 s37, 0x3e32281f, s36")
k("s_and_b32 s37, s37, 0xff")
k("s_lshr_b32 s53, 0x06050408, s36")
k("s_and_b32 s53, s53, 0xff")
k("s_cmp_eq_u32 s46, 0")
k("s_cselect_b32 s36, 3, 2")
k("v_bfe_u32 v8, v2, 2, 2")
k("v_mul_u32_u24 v8, s53, v8")
k("v_lshrrev_b32 v8, 1, v8")
k("v_and_b32 v9, 3, v2")
k("v_min_u32 v9, s36, v9")
k("v_add_u32 v8, v8, v9")
k("v_sub_u32 v8, s37, v8")
k("v_and_b32 v10, 48, v2")
k("v_add_u32 v10, s48, v10")
k(f"s_movk_i32 s36, {KT_PITCH}")
k("v_mad_u32_u24 v8, v8, s36, v10")
k("v_and_b32 v11, 15, v2")
k("v_mad_u32_u24 v9, v11, s36, v10")
k("s_waitcnt lgkmcnt(0)")
stamp(3)
k("s_barrier")
for ks in range(8):
    k(f"ds_read_b128 {v(16+8*ks,4)}, v8 offset:{64*ks}")
    k(f"ds_read_b128 {v(20+8*ks,4)}, v9 offset:{64*ks}")
poll("L_pu", ul, [112], 12, issued=True)
stamp(4)
k("s_cmp_eq_u32 s46, 3")
k("s_cselect_b32 s36, 0, -1")
k("v_and_b32 v12, s36, v114")
k("v_and_b32 v13, s36, v115")
k("s_add_u32 s36, s46, 1")
k("s_and_b32 s36, s36, 3")
k("s_lshl_b32 s37, s47, 2")
k("s_add_u32 s36, s36, s37")
k("s_lshl_b32 s36, s36, 3")
k(f"s_add_u32 s36, s36, {A_SLOT}")
k("v_mov_b32 v14, s36")
k("s_lshl_b32 s36, s3, 3")
k(f"s_add_u32 s36, s36, {A_SLOT}")
k("v_mov_b32 v15, s36")
k("s_mov_b32 exec_lo, 0"); k("s_brev_b32 exec_hi, 1")
k("ds_write_b64 v14, v[12:13]")
k("s_mov_b64 exec, -1")
for ks in range(8): mfma(80, 16+8*ks, 20+8*ks, 80 if ks else None)
k("s_waitcnt lgkmcnt(0)")
k("s_barrier")
k("ds_read_b64 v[98:99], v15")
k("s_lshl_b32 s36, s46, 10")
k("s_add_u32 s36, s36, s48")
k("v_add_u32 v12, s36, v3")
k(f"ds_write_b128 v12, v[112:115] offset:{3*U_PITCH+32}")
k("v_mov_b32 v101, v112"); k("v_mov_b32 v102, v113"); k("v_mov_b32 v103, v114")
k("v_alignbit_b32 v105, v113, v112, 16"); k("v_alignbit_b32 v106, v114, v113, 16"); k("v_alignbit_b32 v107, v115, v114, 16")
k("v_mov_b32 v110, v105"); k("v_mov_b32 v111, v106")
k("v_mov_b32 v13, 0")
k(f"s_mul_i32 s36, s46, {U_PITCH}")
k("s_add_u32 s36, s36, s48")
k("s_mul_i32 s37, s46, 120")
k("s_add_u32 s37, s37, s49")
k(f"s_add_u32 s37, s37, {4096-32}")
k("v_mov_b32 v14, s37"); k("v_mov_b32 v15, s36")
k("v_cmp_gt_u32 vcc, 8, v2")
k("v_cndmask_b32 v14, v14, v15, vcc")
k("v_lshl_add_u32 v14, v2, 2, v14")
k("s_mov_b32 exec_hi, 0x3f")
k("ds_write_b32 v14, v13")
k("s_mov_b64 exec, -1")
k("v_mov_b32_dpp v98, v114 wave_shr:1 row_mask:0xf bank_mask:0xf")
k("v_mov_b32_dpp v99, v115 wave_shr:1 row_mask:0xf bank_mask:0xf")
k("v_mov_b32 v100, v99")
k("v_alignbit_b32 v104, v112, v99, 16")
k("v_alignbit_b32 v108, v99, v98, 16")
k("v_mov_b32 v109, v104")
k(f"ds_write_b128 v12, v[100:103] offset:{U_PITCH+32}")
k(f"ds_write_b128 v12, v[104:107] offset:{2*U_PITCH+32}")
k("ds_write_b128 v12, v[108:111] offset:32")
k("v_lshlrev_b32 v13, 5, v11")
k("v_sub_u32 v13, s49, v13")
k("v_lshrrev_b32 v14, 4, v2")
k("s_cmp_eq_u32 s46, 2")
k("s_cbranch_scc1 L_ke2")
k("s_cmp_eq_u32 s46, 3")
k("s_cbranch_scc1 L_ke3")
with k.cond():
    k("v_lshl_add_u32 v14, v14, 3, v13")
    k("s_lshl_b32 s36, s46, 9")
    k("v_subrev_u32 v14, s36, v14")
    k("v_cvt_pk_bf16_f32 v84, v80, v81")
    k("v_cvt_pk_bf16_f32 v85, v82, v83")
    k("ds_write_b64 v14, v[84:85] offset:4064")
    k("s_branch L_kedone")
    k("L_ke2:")
    k("v_and_b32 v15, 16, v2")
    k("v_add_u32 v15, v15, v13")
    k("v_lshrrev_b32 v14, 5, v2")
    k("v_lshl_add_u32 v14, v14, 9, v15")
    k("v_cvt_pk_bf16_f32 v84, v80, v80"); k("v_cvt_pk_bf16_f32 v85, v81, v81")
    k("v_cvt_pk_bf16_f32 v86, v81, v82"); k("v_cvt_pk_bf16_f32 v87, v82, v82")
    k("ds_write_b128 v14, v[84:87] offset:2528")
    k("s_branch L_kedone")
    k("L_ke3:")
    k("v_lshl_add_u32 v14, v14, 9, v13")
    k("v_cvt_pk_bf16_f32 v84, v80, v80"); k("v_cvt_pk_bf16_f32 v86, v81, v81")
    k("v_cvt_pk_bf16_f32 v89, v81, v82"); k("v_cvt_pk_bf16_f32 v90, v82, v82")
    k("v_mov_b32 v85, v84"); k("v_mov_b32 v87, v86"); k("v_mov_b32 v88, v86"); k("v_mov_b32 v91, v90")
    k("ds_write_b128 v14, v[84:87] offset:480")
    k("ds_write_b128 v14, v[88:91] offset:496")
k("L_kedone:")
k("s_lshl_b32 s36, s46, 7")
k("v_and_b32 v10, 48, v2")
k("v_add3_u32 v9, v13, v10, s36")
k("v_and_b32 v8, 3, v2")
k(f"v_mul_u32_u24 v8, {U_PITCH}, v8")
k("v_and_b32 v14, 12, v2")
k("v_lshl_add_u32 v8, v14, 1, v8")
k("s_add_u32 s36, s36, s48")
k("v_add3_u32 v8, v8, v10, s36")
k("s_waitcnt lgkmcnt(0)")
stamp(5)
k("s_barrier")
ACC, FA, FB = 16, 48, 80
def rdA(q, rr):
    k(f"ds_read_b64 {v(FA+4*q,2)}, v8 offset:{8+512*q+64*rr}")
    k(f"ds_read_b64 {v(FA+4*q+2,2)}, v8 offset:{16+512*q+64*rr}")
def rdB(j, rr): k(f"ds_read_b128 {v(FB+4*j,4)}, v9 offset:{480+512*(7-j)+64*rr}")
for q in range(7, -1, -1):
    rdA(q, 0); rdB(7-q, 0)
for rr in range(2):
    for q in range(7, -1, -1):
        for j in range(8-q):
            t = q + j
            mfma(ACC+4*t, FA+4*q, FB+4*j, None if (rr == 0 and j == 0) else ACC+4*t)
            if rr == 0 and q == 0: rdB(j, 1)
        if rr == 0: rdA(q, 1)
stamp(6)
k("s_lshl_b32 s36, s46, 12")
k("s_add_u32 s36, s36, s48")
k("v_add_u32 v8, s36, v3")
k("s_lshl_b32 s36, s46, 10")
k("s_add_u32 s36, s36, s48")
k("v_add_u32 v9, s36, v3")
k("s_mov_b32 s36, 0xffff0000")
for d in range(4):
    for i in range(4): k(f"v_cvt_pk_bf16_f32 v{FA+4*d+i}, v{ACC+8*d+2*i}, v{ACC+8*d+2*i+1}")
    k(f"ds_write_b128 v8, {v(FA+4*d,4)} offset:{A_PART+1024*d}")
k("s_waitcnt lgkmcnt(0)")
k("s_barrier")
for s_ in range(4): k(f"ds_read_b128 {v(FB+4*s_,4)}, v9 offset:{A_PART+4096*s_}")
for i in range(4):
    k(f"v_lshlrev_b32 v{ACC+2*i}, 16, v{FB+i}")
    k(f"v_and_b32 v{ACC+2*i+1}, 0xffff0000, v{FB+i}")
for s_ in range(1, 4):
    for i in range(4):
        k(f"v_lshlrev_b32 v{ACC+8+2*i}, 16, v{FB+4*s_+i}")
        k(f"v_and_b32 v{ACC+9+2*i}, s36, v{FB+4*s_+i}")
    for i in range(8): k(f"v_add_f32 v{ACC+i}, v{ACC+i}, v{ACC+8+i}")
for i in range(4): k(f"v_cvt_pk_bf16_f32 v{FA+i}, v{ACC+2*i}, v{ACC+2*i+1}")
emit(tag_ins(FA, inv=True))
k(f"global_store_dwordx4 v3, {v(FA,4)}, s[40:41] sc1")
stamp(7)
k("s_cmp_eq_u32 s59, 0")
k("s_cbranch_scc1 L_end")

k("L_tile_out:")
k("s_lshr_b32 s36, s57, 3")
k("s_lshl_b32 s36, s36, 9")
k("s_bfe_u32 s37, s57, 0x20001")
k("s_lshl_b32 s37, s37, 2")
k("s_add_u32 s36, s36, s37")
k("s_and_b32 s37, s57, 1")
k("s_lshl_b32 s37, s37, 7")
k("s_add_u32 s36, s36, s37")
k("s_lshl_b32 s37, s3, 4")
k("s_add_u32 s36, s36, s37")
k("v_bfe_u32 v8, v0, 3, 2")
k("v_bfe_u32 v9, v0, 5, 1")
k("v_lshl_add_u32 v8, v9, 8, v8")
k("v_add_u32 v8, s36, v8")
k("v_and_b32 v9, 7, v0")
k("v_lshlrev_b32 v9, 4, v9")
k("s_lshl_b32 s37, s58, 7")
k("v_add_u32 v9, s37, v9")
k("s_movk_i32 s36, 1152")
k("v_mad_u32_u24 v10, v8, s36, v9")
k("global_load_dwordx4 v[12:15], v10, s[8:9]")
k("global_load_dwordx4 v[16:19], v9, s[20:21]")
k("s_movk_i32 s36, 2304")
k("v_mad_u32_u24 v10, v8, s36, v9")
k(f"v_subrev_u32 v120, {A_TAIL}, v120")
k(f"v_subrev_u32 v121, {A_TAIL}, v121")
k("s_waitcnt vmcnt(0)")
stamp(8)
yl = ["global_load_dwordx4 v[124:127], v122, s[60:61] sc1"]
emit(yl)
for i in range(4):
    k(f"v_lshlrev_b32 v{20+2*i}, 16, v{12+i}"); k(f"v_and_b32 v{21+2*i}, 0xffff0000, v{12+i}")
    k(f"v_lshlrev_b32 v28, 16, v{16+i}"); k(f"v_and_b32 v29, 0xffff0000, v{16+i}")
    k(f"v_mul_f32 v{20+2*i}, v{20+2*i}, v28"); k(f"v_mul_f32 v{21+2*i}, v{21+2*i}, v29")
    k(f"v_cvt_pk_bf16_f32 v{12+i}, v{20+2*i}, v{21+2*i}")
    k(f"v_lshlrev_b32 v{20+2*i}, 16, v{12+i}"); k(f"v_and_b32 v{21+2*i}, 0xffff0000, v{12+i}")
poll("L_py", yl, [124], 28, inv=True, issued=True, sleep=4)
stamp(9)
k("ds_write_b128 v120, v[124:127]")
k("s_waitcnt lgkmcnt(0)")
k("s_barrier")
for j in range(8): k(f"ds_read_u16_d16_hi v{32+j}, v121 offset:{128*j}")
for i in range(4):
    k(f"v_add_f32 v{32+2*i}, v{32+2*i}, v{20+2*i}"); k(f"v_add_f32 v{33+2*i}, v{33+2*i}, v{21+2*i}")
    k(f"v_cvt_pk_bf16_f32 v{12+i}, v{32+2*i}, v{33+2*i}")
k("global_store_dwordx4 v10, v[12:15], s[28:29]")
end_wave()

if PROF:
    k("L_prof:")
    k("s_waitcnt vmcnt(0)")
    stamp(15)
    k("s_mov_b64 exec, 1")
    k("s_lshl_b32 s36, s2, 3")
    k("s_add_u32 s36, s36, s3")
    k("s_lshl_b32 s36, s36, 6")
    k(f"s_add_u32 s36, s36, {STAMP_BASE}")
    k("v_mov_b32 v1, s36")
    k("s_waitcnt lgkmcnt(0)")
    k("s_mov_b32 s92, s96")
    for i in range(16): k(f"v_mov_b32 v{8+i}, s{64+2*i}")
    for i in range(4): k(f"global_store_dwordx4 v1, {v(8+4*i,4)}, s[32:33] offset:{16*i}")
    if DBGWG is not None:
        k("s_lshl_b32 s36, s2, 3"); k("s_add_u32 s36, s36, s3")
        k(f"s_cmp_lg_u32 s36, {DBGWG*8}")
        k("s_cbranch_scc1 L_exit")
        k("s_nop 4")
        for i in range(16): k(f"v_subrev_u32 v{8+i}, s64, v{8+i}")
        k("v_mov_b32 v1, 0")
        for i in range(4): k(f"global_store_dwordx4 v1, {v(8+4*i,4)}, s[30:31] offset:{16*i}")
        if ENC is not None:
            k(f"s_sub_u32 s36, s{64+2*ENC}, s64")
            k("s_lshl_b32 s36, s36, 2")
            k("s_add_u32 s36, s36, 4000")
            k("s_min_u32 s36, s36, 100000")
            k("L_enc_chk:")
            k("s_memrealtime s[38:39]")
            k("s_waitcnt lgkmcnt(0)")
            k("s_sub_u32 s37, s38, s64")
            k("s_cmp_lt_u32 s37, s36")
            k("s_cbranch_scc1 L_enc_chk")
k("L_exit:")
k("s_endpgm")

body = k.text()
mv, ms = k.maxregs()
assert mv < 128, mv
tb = build_tables()
hdr = open("cdna_kernels/" + NAME + ".s.ref").read().split("; Override launch")[0] if "--nohdr" not in sys.argv else ""
s = hdr + "; @launch grid=(512,1,1) block=(512,1,1) lds=81920\n"
s += f'.amdgcn_target "amdgcn-amd-amdhsa--gfx950"\n.text\n.globl {NAME}_kernel\n.p2align 8\n.type {NAME}_kernel,@function\n{NAME}_kernel:\n'
s += body
s += ".p2align 8\n.type L_tables,@object\nL_tables:\n"
q = tb.view(np.uint64)
for i in range(0, len(q), 8):
    s += ".quad " + ",".join(hex(int(x)) for x in q[i:i+8]) + "\n"
s += f".size L_tables, {len(tb)*4}\n"
s += f""".section .rodata,"a"
.p2align 6
.amdhsa_kernel {NAME}_kernel
  .amdhsa_next_free_vgpr 128
  .amdhsa_next_free_sgpr 100
  .amdhsa_accum_offset 128
  .amdhsa_group_segment_fixed_size 0
  .amdhsa_kernarg_size 104
  .amdhsa_user_sgpr_count 2
  .amdhsa_user_sgpr_kernarg_segment_ptr 1
  .amdhsa_system_sgpr_workgroup_id_x 1
.end_amdhsa_kernel
"""
open(OUT, "w").write(s)
print("instrs", len(k.ins), "maxv", mv, "maxs", ms, "bytes", len(s))
```
